```python
import torch

def _softmax(x, axis=-1):
    return torch.softmax(x, dim=axis)
def _gelu(x):
    return torch.nn.functional.gelu(x, approximate="tanh")
def _silu(x):
    return torch.nn.functional.silu(x)
def _sigmoid(x):
    return torch.sigmoid(x)
def _layernorm(x, axis=-1, eps=1e-5):
    m = x.mean(dim=axis, keepdim=True)
    v = x.var(dim=axis, keepdim=True, unbiased=False)
    return (x - m) / torch.sqrt(v + eps)
def _scatter_add(tgt, idx, src, axis=0):
    return tgt.clone().index_add_(axis, idx, src)
def _segment_sum(src, seg, n):
    out = torch.zeros((n,) + src.shape[1:], dtype=src.dtype)
    return out.index_add_(0, seg, src)
def _pad(x, pw):
    flat = tuple(v for pair in reversed(pw) for v in pair)
    return torch.nn.functional.pad(x, flat)

kernel_name = 'sequential_preLN__mha_block__mixer_s_mlp__prompt'

def setup_inputs():

    _w = (lambda a: (lambda t: t.to(torch.bfloat16) if t.is_floating_point() else t)(torch.as_tensor(a)))
    def _A_setup():
        B, S, D, H = 1, 2048, 576, 32
        return {
            "x": _w((lambda *s: torch.randn(*s, dtype=torch.bfloat16) * 0.05)(B, S, D)),
            "wqkv": _w((lambda *s: torch.randn(*s, dtype=torch.bfloat16) * 0.05)(D, 3 * D)),
            "wo": _w((lambda *s: torch.randn(*s, dtype=torch.bfloat16) * 0.05)(D, D)),
        }
    _A_in = _A_setup()

    def _B_setup():
        B, S, D, F = 1, 2048, 576, 4608
        return {
            "x":  _w((lambda *s: torch.randn(*s, dtype=torch.bfloat16) * 0.05)(B, S, D)),
            "w1": _w((lambda *s: torch.randn(*s, dtype=torch.bfloat16) * 3.2)(D, D) * (D ** -0.5)),
            "w2": _w((lambda *s: torch.randn(*s, dtype=torch.bfloat16) * 3.2)(D, D) * (D ** -0.5)),
            "w3": _w((lambda *s: torch.randn(*s, dtype=torch.bfloat16) * 3.2)(D, F) * (D ** -0.5)),
            "w4": _w((lambda *s: torch.randn(*s, dtype=torch.bfloat16) * 3.2)(F, D) * (F ** -0.5)),
        }
    _B_in = _B_setup()

    return {
        "A_x": _A_in["x"],
        "A_wqkv": _A_in["wqkv"],
        "A_wo": _A_in["wo"],
        "B_x": _B_in["x"],
        "B_w1": _B_in["w1"],
        "B_w2": _B_in["w2"],
        "B_w3": _B_in["w3"],
        "B_w4": _B_in["w4"],
    }

def reference(A_x, A_wqkv, A_wo, B_x, B_w1, B_w2, B_w3, B_w4):
    def _A_ref(x, wqkv, wo):
        B, S, D = x.shape
        H = 32
        Dh = D // H
        qkv = (lambda x, *d: x.permute(*d))((x @ wqkv).reshape(B, S, 3, H, Dh), 2, 0, 3, 1, 4)
        q, k, v = qkv[0], qkv[1], qkv[2]
        scores = torch.einsum("bhqd,bhkd->bhqk", q, k) * (Dh ** -0.5)
        p = _softmax(scores, axis=-1)
        o = torch.einsum("bhqk,bhkd->bhqd", p, v)
        return (lambda x, *d: x.permute(*d))(o, 0, 2, 1, 3).reshape(B, S, D) @ wo

    def _B_ref(x, w1, w2, w3, w4):
        B, S, D = x.shape
        h = _gelu(_layernorm(x, axis=-1) @ w1)
        c = D // 4
        g0 = _pad(h[:, :, 0*c:1*c], ((0, 0), (1, 0), (0, 0)))[:, :S, :]
        g1 = _pad(h[:, :, 1*c:2*c], ((0, 0), (0, 1), (0, 0)))[:, 1:, :]
        g2 = _pad(h[:, :, 2*c:3*c], ((0, 0), (2, 0), (0, 0)))[:, :S, :]
        g3 = _pad(h[:, :, 3*c:   ], ((0, 0), (0, 2), (0, 0)))[:, 2:, :]
        hs = torch.concatenate([g0, g1, g2, g3], axis=-1) @ w2
        x1 = x + hs
        h2 = _gelu(_layernorm(x1, axis=-1) @ w3) @ w4
        return x1 + h2

    x = A_x
    h = x + _A_ref(_layernorm(x, axis=-1), A_wqkv, A_wo)
    h2 = h + _B_ref(_layernorm(h, axis=-1), B_w1, B_w2, B_w3, B_w4)
    return h2
```

```python
import json, sys, math

S, D, H, DH, F = 2048, 576, 32, 18, 4608
KA = dict(x=0, wqkv=8, wo=16, bx=24, w1=32, w2=40, w3=48, w4=56, out=64, dbg=72, ws=80)
SZ = S * D * 2
LAY = dict(XN=0, QKVT=0x400000, O=0xC00000, H=0x1000000, XP=0x1400000, XPP=0x1800000,
           HH=0x1C00000, X1=0x2000000, X1N=0x2400000, G=0x2800000)
BIG = 0x7fffff00

class Asm:
    def __init__(self):
        self.lines = []
        self.kernels = []
        self.uid = 0
    def __call__(self, s):
        self.lines.append("    " + s)
    def label(self, l):
        self.lines.append(l + ":")
    def newlabel(self, p="L"):
        self.uid += 1
        return f"{p}_{self.uid}"
    def begin(self, name):
        self.lines.append(f".globl {name}")
        self.lines.append(".p2align 8")
        self.lines.append(f".type {name},@function")
        self.lines.append(f"{name}:")
    def end(self, name, grid, block, lds, vgpr, sgpr=100):
        self.kernels.append((name, grid, block, lds, vgpr, sgpr))

def srd(a, sd, plo, off, nbytes):
    if off:
        a(f"s_add_u32 s{sd}, s{plo}, {off}")
        a(f"s_addc_u32 s{sd+1}, s{plo+1}, 0")
    else:
        a(f"s_mov_b32 s{sd}, s{plo}")
        a(f"s_mov_b32 s{sd+1}, s{plo+1}")
    a(f"s_mov_b32 s{sd+2}, {nbytes}")
    a(f"s_mov_b32 s{sd+3}, 0x00020000")

def wave_sum(a, v, sdst):
    for sh in (1, 2, 4, 8):
        a("s_nop 1")
        a(f"v_add_f32_dpp v{v}, v{v}, v{v} row_shr:{sh} row_mask:0xf bank_mask:0xf bound_ctrl:0")
    a("s_nop 1")
    a(f"v_add_f32_dpp v{v}, v{v}, v{v} row_bcast:15 row_mask:0xa bank_mask:0xf")
    a("s_nop 1")
    a(f"v_add_f32_dpp v{v}, v{v}, v{v} row_bcast:31 row_mask:0xc bank_mask:0xf")
    a("s_nop 1")
    a(f"v_readlane_b32 s{sdst}, v{v}, 63")
    a("s_nop 3")

def bf16r(a, vd, vs):
    a(f"v_cvt_pk_bf16_f32 v{vd}, v{vs}, v{vs}")
    a(f"v_lshlrev_b32 v{vd}, 16, v{vd}")

def ln_body(a, X, T, MASK):
    t0, t1, t2 = T, T + 1, T + 2
    a(f"v_add_f32 v{t0}, v{X[0]}, v{X[1]}")
    for i in range(2, 10):
        a(f"v_add_f32 v{t0}, v{t0}, v{X[i]}")
    wave_sum(a, t0, 20)
    a(f"v_mov_b32 v{t1}, s20")
    a(f"v_mul_f32 v{t1}, {1.0/576.0!r}, v{t1}")
    a(f"v_sub_f32 v{t2}, v{X[0]}, v{t1}")
    a(f"v_mul_f32 v{t0}, v{t2}, v{t2}")
    for i in range(1, 10):
        a(f"v_sub_f32 v{t2}, v{X[i]}, v{t1}")
        if i >= 8:
            a(f"v_mul_f32 v{t2}, v{t2}, v{MASK}")
        a(f"v_fmac_f32 v{t0}, v{t2}, v{t2}")
    wave_sum(a, t0, 21)
    a(f"v_mov_b32 v{t0}, s21")
    a(f"v_mul_f32 v{t0}, {1.0/576.0!r}, v{t0}")
    bf16r(a, t0, t0)
    a(f"v_add_f32 v{t0}, {1e-5!r}, v{t0}")
    bf16r(a, t0, t0)
    a(f"v_sqrt_f32 v{t0}, v{t0}")
    a("s_nop 0")
    bf16r(a, t0, t0)
    a(f"v_rcp_f32 v{t0}, v{t0}")
    bf16r(a, t1, t1)
    for i in range(10):
        a(f"v_sub_f32 v{X[i]}, v{X[i]}, v{t1}")
        bf16r(a, X[i], X[i])
        a(f"v_mul_f32 v{X[i]}, v{X[i]}, v{t0}")
        bf16r(a, X[i], X[i])

def ln_kernel(a, name, src, dst1, dst2=None):
    a.begin(name)
    a("s_cmp_ge_u32 s2, 512")
    L = a.newlabel("LNEND")
    a(f"s_cbranch_scc1 {L}")
    a(f"s_load_dwordx2 s[6:7], s[0:1], {KA['ws']}")
    if src[0] == 'arg':
        a(f"s_load_dwordx2 s[4:5], s[0:1], {KA[src[1]]}")
    a("s_waitcnt lgkmcnt(0)")
    if src[0] == 'arg':
        srd(a, 8, 4, 0, SZ)
    else:
        srd(a, 8, 6, LAY[src[1]], SZ)
    srd(a, 12, 6, LAY[dst1], SZ)
    if dst2:
        srd(a, 16, 6, LAY[dst2], SZ)
    a("v_lshrrev_b32 v1, 6, v0")
    a("v_and_b32 v2, 63, v0")
    a("s_lshl_b32 s3, s2, 2")
    a("v_add_u32 v1, s3, v1")
    a("s_movk_i32 s20, 1152")
    a("v_mul_lo_u32 v1, v1, s20")
    a("v_lshl_add_u32 v3, v2, 2, v1")
    a("v_cmp_gt_u32 vcc, 32, v2")
    a(f"v_mov_b32 v4, {BIG}")
    a("s_nop 1")
    a("v_cndmask_b32 v4, v4, v3, vcc")
    a("v_cndmask_b32_e64 v5, 0, 1.0, vcc")
    for i in range(4):
        a(f"buffer_load_dword v{10+i}, v3, s[8:11], 0 offen offset:{256*i}")
    a("buffer_load_dword v14, v4, s[8:11], 0 offen offset:1024")
    a("s_waitcnt vmcnt(0)")
    X = list(range(20, 30))
    for i in range(5):
        a(f"v_lshlrev_b32 v{20+2*i}, 16, v{10+i}")
        a(f"v_and_b32 v{21+2*i}, 0xffff0000, v{10+i}")
    ln_body(a, X, 6, 5)
    for i in range(5):
        a(f"v_cvt_pk_bf16_f32 v{10+i}, v{20+2*i}, v{21+2*i}")
    for i in range(4):
        a(f"buffer_store_dword v{10+i}, v3, s[12:15], 0 offen offset:{256*i}")
    a("buffer_store_dword v14, v4, s[12:15], 0 offen offset:1024")
    if dst2:
        ln_body(a, X, 6, 5)
        for i in range(5):
            a(f"v_cvt_pk_bf16_f32 v{30+i}, v{20+2*i}, v{21+2*i}")
        for i in range(4):
            a(f"buffer_store_dword v{30+i}, v3, s[16:19], 0 offen offset:{256*i}")
        a("buffer_store_dword v34, v4, s[16:19], 0 offen offset:1024")
    a.label(L)
    a("s_endpgm")
    a.end(name, (512, 1, 1), (256, 1, 1), 0, 40)

def magic_div(d):
    return (2**32 + d - 1) // d

def gelu_inplace(a, v, t):
    c0 = math.sqrt(2.0 / math.pi)
    k1 = -2.0 * math.log2(math.e) * c0
    k2 = k1 * 0.044715
    a(f"v_mul_f32 v{t}, v{v}, v{v}")
    a(f"v_mov_b32 v{t+1}, {k1!r}")
    a(f"v_fmac_f32 v{t+1}, {k2!r}, v{t}")
    a(f"v_mul_f32 v{t}, v{t+1}, v{v}")
    a(f"v_exp_f32 v{t}, v{t}")
    a("s_nop 0")
    a(f"v_add_f32 v{t}, 1.0, v{t}")
    a(f"v_rcp_f32 v{t}, v{t}")
    a("s_nop 0")
    a(f"v_mul_f32 v{v}, v{v}, v{t}")

def gemm_kernel(a, name, N, K, A, B, epi, BM=128, BN=64, lda=None, shift=False, C=None, R1=None, R2=None):
    M = S
    lda = lda or K
    lda2, ldb2 = lda * 2, N * 2
    tiles_n, tiles_m = N // BN, M // BM
    ntiles = tiles_n * tiles_m
    WN = 2; WM = 2
    TM, TN = BM // WM, BN // WN
    TI, TJ = TM // 32, TN // 32
    ASTR = 144
    BSTR = BN * 2 + 64
    ABUF = BM * ASTR
    BBUF = 64 * BSTR
    LDSB0 = 2 * ABUF
    LDS = 2 * ABUF + 2 * BBUF
    AL = BM * 8 // 256
    BL = BN * 8 * 64 // 8 // 256 // 8 * 8 // 8 if False else (64 * BN // 8) // 256
    bchunks = BN // 8
    brows = 256 // bchunks
    nk = K // 64
    swapped = epi != 'qkvt'
    vAst = 4
    vBst = vAst + 4 * AL
    vAf = vBst + 4 * BL
    vBf = vAf + 2 * TI * 4
    vAcc = vBf + 2 * TJ * 4
    vT = vAcc + TI * TJ * 16
    vGA, vGB, vLA, vLB, vRA, vRB = vT, vT + 1, vT + 2, vT + 3, vT + 4, vT + 5
    vGAs = vT + 6
    vKC = vGAs + AL
    vE = (vKC + 2) // 2 * 2
    nvg = vE + 16
    a.begin(name)
    a(f"s_cmp_ge_u32 s2, {ntiles}")
    LEND = a.newlabel("GEND")
    a(f"s_cbranch_scc1 {LEND}")
    a(f"s_load_dwordx2 s[6:7], s[0:1], {KA['ws']}")
    a(f"s_load_dwordx2 s[4:5], s[0:1], {KA[B]}")
    if C[0] == 'arg' or (R1 and R1[0] == 'arg'):
        key = C[1] if C[0] == 'arg' else R1[1]
        a(f"s_load_dwordx2 s[28:29], s[0:1], {KA[key]}")
    a(f"s_mov_b32 s30, {magic_div(tiles_n)}")
    a("s_mul_hi_u32 s31, s2, s30")
    a(f"s_mul_i32 s32, s31, {tiles_n}")
    a("s_sub_u32 s32, s2, s32")
    a(f"s_mul_i32 s33, s31, {BM}")
    a(f"s_mul_i32 s34, s32, {BN}")
    a("s_waitcnt lgkmcnt(0)")
    asz = M * lda2
    srd(a, 8, 6, LAY[A[1]], asz)
    srd(a, 12, 4, 0, K * ldb2)
    if C[0] == 'ws':
        srd(a, 16, 6, LAY[C[1]], (1728 * 4096) if epi == 'qkvt' else M * N * 2)
    else:
        srd(a, 16, 28, 0, M * N * 2)
    if R1:
        if R1[0] == 'ws':
            srd(a, 20, 6, LAY[R1[1]], SZ)
        else:
            srd(a, 20, 28, 0, SZ)
    if R2:
        srd(a, 24, 6, LAY[R2[1]], SZ)
    a("v_lshrrev_b32 v1, 6, v0")
    a("s_nop 0")
    a("v_readfirstlane_b32 s35, v1")
    a("v_and_b32 v2, 63, v0")
    a("s_lshr_b32 s36, s35, 1")
    a("s_and_b32 s37, s35, 1")
    a(f"v_lshrrev_b32 v1, 3, v0")
    a(f"v_and_b32 v{vKC}, 7, v0")
    a(f"v_add_u32 v3, s33, v1")
    a(f"s_mov_b32 s38, {lda2}")
    a(f"v_mul_lo_u32 v{vGA}, v3, s38")
    a(f"v_lshl_add_u32 v{vGA}, v{vKC}, 4, v{vGA}")
    a(f"s_movk_i32 s38, {ASTR}")
    a(f"v_mul_lo_u32 v{vLA}, v1, s38")
    a(f"v_lshl_add_u32 v{vLA}, v{vKC}, 4, v{vLA}")
    if shift:
        a(f"v_lshlrev_b32 v{vKC}, 3, v{vKC}")
    lg = int(math.log2(bchunks))
    a(f"v_lshrrev_b32 v1, {lg}, v0")
    a(f"v_and_b32 v3, {bchunks-1}, v0")
    a(f"s_mov_b32 s38, {ldb2}")
    a(f"v_mul_lo_u32 v{vGB}, v1, s38")
    a(f"v_lshl_add_u32 v{vGB}, v3, 4, v{vGB}")
    a(f"s_lshl_b32 s38, s34, 1")
    a(f"v_add_u32 v{vGB}, s38, v{vGB}")
    a(f"s_movk_i32 s38, {BSTR}")
    a(f"v_mul_lo_u32 v{vLB}, v1, s38")
    a(f"v_lshl_add_u32 v{vLB}, v3, 4, v{vLB}")
    a(f"v_add_u32 v{vLB}, {LDSB0}, v{vLB}")
    a("v_and_b32 v1, 31, v2")
    a(f"s_mul_i32 s38, s36, {TM}")
    a("v_add_u32 v1, s38, v1")
    a(f"s_movk_i32 s38, {ASTR}")
    a(f"v_mul_lo_u32 v{vRA}, v1, s38")
    a("v_lshrrev_b32 v3, 5, v2")
    a(f"v_lshl_add_u32 v{vRA}, v3, 4, v{vRA}")
    a("v_lshrrev_b32 v1, 5, v2")
    a("v_bfe_u32 v3, v2, 2, 2")
    a("v_lshl_add_u32 v1, v1, 3, v3")
    a(f"s_movk_i32 s38, {BSTR}")
    a(f"v_mul_lo_u32 v{vRB}, v1, s38")
    a("v_bfe_u32 v1, v2, 4, 1")
    a("v_and_b32 v3, 3, v2")
    a("v_lshl_add_u32 v1, v1, 2, v3")
    a(f"v_lshl_add_u32 v{vRB}, v1, 3, v{vRB}")
    a(f"s_mul_i32 s38, s37, {TN*2}")
    a(f"s_add_u32 s38, s38, {LDSB0}")
    a(f"v_add_u32 v{vRB}, s38, v{vRB}")
    sA0, sB0 = 40, 44
    for i in range(AL):
        a(f"s_mov_b32 s{sA0+i}, {i*32*lda2}")
    for i in range(BL):
        a(f"s_mov_b32 s{sB0+i}, {i*brows*ldb2}")
    for i in range(TI * TJ * 16):
        a(f"v_mov_b32 v{vAcc+i}, 0")

    def shift_offsets(kstep_sgpr):
        a(f"v_add_u32 v1, s{kstep_sgpr}, v{vKC}")
        a(f"v_mov_b32 v3, {-1*lda2}")
        a("v_cmp_le_u32 vcc, 144, v1")
        a(f"v_mov_b32 v{vE}, {1*lda2}")
        a("s_nop 0")
        a(f"v_cndmask_b32 v3, v3, v{vE}, vcc")
        a("v_cmp_le_u32 vcc, 288, v1")
        a(f"v_mov_b32 v{vE}, {-2*lda2}")
        a("s_nop 0")
        a(f"v_cndmask_b32 v3, v3, v{vE}, vcc")
        a("v_cmp_le_u32 vcc, 432, v1")
        a(f"v_mov_b32 v{vE}, {2*lda2}")
        a("s_nop 0")
        a(f"v_cndmask_b32 v3, v3, v{vE}, vcc")
        a(f"v_add_u32 v3, v3, v{vGA}")
        a(f"v_lshl_add_u32 v3, s{kstep_sgpr}, 1, v3")
        for i in range(AL):
            a(f"v_add_u32 v{vGAs+i}, {i*32*lda2}, v3")

    def issue_loads():
        for i in range(AL):
            if shift:
                a(f"buffer_load_dwordx4 v[{vAst+4*i}:{vAst+4*i+3}], v{vGAs+i}, s[8:11], 0 offen")
            else:
                a(f"buffer_load_dwordx4 v[{vAst+4*i}:{vAst+4*i+3}], v{vGA}, s[8:11], s{sA0+i} offen")
        for i in range(BL):
            a(f"buffer_load_dwordx4 v[{vBst+4*i}:{vBst+4*i+3}], v{vGB}, s[12:15], s{sB0+i} offen")
    def advance():
        for i in range(AL):
            a(f"s_add_u32 s{sA0+i}, s{sA0+i}, 128")
        for i in range(BL):
            a(f"s_add_u32 s{sB0+i}, s{sB0+i}, {64*ldb2}")
    def write_lds(buf):
        for i in range(AL):
            a(f"ds_write_b128 v{vLA}, v[{vAst+4*i}:{vAst+4*i+3}] offset:{buf*ABUF + i*32*ASTR}")
        for i in range(BL):
            a(f"ds_write_b128 v{vLB}, v[{vBst+4*i}:{vBst+4*i+3}] offset:{buf*BBUF + i*brows*BSTR}")
    def read_frags(buf, kk, st):
        for i in range(TI):
            r = vAf + (st * TI + i) * 4
            a(f"ds_read_b128 v[{r}:{r+3}], v{vRA} offset:{buf*ABUF + i*32*ASTR + kk*32}")
        for j in range(TJ):
            r = vBf + (st * TJ + j) * 4
            a(f"ds_read_b64_tr_b16 v[{r}:{r+1}], v{vRB} offset:{buf*BBUF + (kk*16)*BSTR + j*64}")
            a(f"ds_read_b64_tr_b16 v[{r+2}:{r+3}], v{vRB} offset:{buf*BBUF + (kk*16+4)*BSTR + j*64}")
    nreads = TI + 2 * TJ
    def compute(buf):
        read_frags(buf, 0, 0)
        for kk in range(4):
            st = kk & 1
            if kk < 3:
                read_frags(buf, kk + 1, st ^ 1)
                a(f"s_waitcnt lgkmcnt({nreads})")
            else:
                a("s_waitcnt lgkmcnt(0)")
            for i in range(TI):
                for j in range(TJ):
                    ra = vAf + (st * TI + i) * 4
                    rb = vBf + (st * TJ + j) * 4
                    c = vAcc + (i * TJ + j) * 16
                    if swapped:
                        a(f"v_mfma_f32_32x32x16_bf16 v[{c}:{c+15}], v[{rb}:{rb+3}], v[{ra}:{ra+3}], v[{c}:{c+15}]")
                    else:
                        a(f"v_mfma_f32_32x32x16_bf16 v[{c}:{c+15}], v[{ra}:{ra+3}], v[{rb}:{rb+3}], v[{c}:{c+15}]")

    a("s_mov_b32 s39, 0")
    if shift:
        shift_offsets(39)
    issue_loads()
    a("s_waitcnt vmcnt(0)")
    write_lds(0)
    a("s_waitcnt lgkmcnt(0)")
    a("s_barrier")
    LOOP = a.newlabel("GLOOP")
    a(f"s_mov_b32 s50, 0")
    a.label(LOOP)
    for buf in range(2):
        LSK = a.newlabel("GSK")
        a(f"s_add_u32 s51, s50, 1")
        a(f"s_cmp_ge_u32 s51, {nk}")
        a(f"s_cbranch_scc1 {LSK}")
        advance()
        a("s_add_u32 s39, s39, 64")
        if shift:
            shift_offsets(39)
        issue_loads()
        a.label(LSK)
        compute(buf)
        LSK2 = a.newlabel("GSK")
        a(f"s_cmp_ge_u32 s51, {nk}")
        LDONE = a.newlabel("GDONE")
        a(f"s_cbranch_scc1 {LDONE}")
        a("s_waitcnt vmcnt(0)")
        write_lds(buf ^ 1)
        a("s_waitcnt lgkmcnt(0)")
        a("s_barrier")
        a("s_add_u32 s50, s50, 1")
        if buf == 1:
            a(f"s_branch {LOOP}")
            a.label(LDONE)
        else:
            LD0 = LDONE
    a.label(LD0)
    a("s_nop 15")
    a("s_nop 15")
    e0 = vE
    if epi == 'qkvt':
        a("v_and_b32 v1, 31, v2")
        a(f"s_mul_i32 s38, s37, {TN}")
        a("s_add_u32 s38, s38, s34")
        a("v_add_u32 v1, s38, v1")
        a("v_lshlrev_b32 v1, 12, v1")
        a("v_lshrrev_b32 v3, 5, v2")
        a(f"s_cmp_lt_u32 s34, 576")
        a(f"s_cselect_b32 s52, {hex(f32bits(math.log2(math.e)/math.sqrt(18.0)))}, 1.0")
        a(f"s_cmp_ge_u32 s34, 1152")
        a("s_cselect_b32 s53, 1, 0")
        a(f"s_mul_i32 s38, s36, {TM}")
        a("s_add_u32 s38, s38, s33")
        for i in range(TI):
            for j in range(TJ):
                c = vAcc + (i * TJ + j) * 16
                for q in range(4):
                    r = c + 4 * q
                    a(f"v_mul_f32 v{r}, s52, v{r}")
                    a(f"v_mul_f32 v{r+1}, s52, v{r+1}")
                    a(f"v_mul_f32 v{r+2}, s52, v{r+2}")
                    a(f"v_mul_f32 v{r+3}, s52, v{r+3}")
                    a(f"v_cvt_pk_bf16_f32 v{e0}, v{r}, v{r+1}")
                    a(f"v_cvt_pk_bf16_f32 v{e0+1}, v{r+2}, v{r+3}")
                    a(f"v_lshlrev_b32 v{e0+2}, 3, v3")
                    a(f"v_add_u32 v{e0+2}, {(q&1)*16}, v{e0+2}")
                    a(f"v_lshlrev_b32 v{e0+3}, 4, v3")
                    a(f"v_add_u32 v{e0+3}, {(q&1)*8}, v{e0+3}")
                    a("s_cmp_eq_u32 s53, 1")
                    a("s_cselect_b64 vcc, -1, 0")
                    a("s_nop 0")
                    a(f"v_cndmask_b32 v{e0+2}, v{e0+2}, v{e0+3}, vcc")
                    a(f"v_add_u32 v{e0+2}, v{e0+2}, v1")
                    tokoff = (i * 32 + (q >> 1) * 16) * 2
                    a(f"s_lshl_b32 s54, s38, 1")
                    a(f"s_add_u32 s54, s54, {tokoff + j*32*4096}")
                    a(f"buffer_store_dwordx2 v[{e0}:{e0+1}], v{e0+2}, s[16:19], s54 offen")
                    a("s_nop 1")
    else:
        ldc2 = N * 2
        a("v_and_b32 v1, 31, v2")
        a(f"s_mul_i32 s38, s36, {TM}")
        a("s_add_u32 s38, s38, s33")
        a("v_add_u32 v1, s38, v1")
        a(f"s_mov_b32 s38, {ldc2}")
        a("v_mul_lo_u32 v1, v1, s38")
        a("v_lshrrev_b32 v3, 5, v2")
        a("v_lshl_add_u32 v1, v3, 3, v1")
        a(f"s_mul_i32 s38, s37, {TN*2}")
        a("s_lshl_b32 s52, s34, 1")
        a("s_add_u32 s38, s38, s52")
        a("v_add_u32 v1, s38, v1")
        for i in range(TI):
            a(f"s_mov_b32 s54, {i*32*ldc2}")
            for j in range(TJ):
                c = vAcc + (i * TJ + j) * 16
                if R1:
                    for q in range(4):
                        a(f"buffer_load_dwordx2 v[{e0+2*q}:{e0+2*q+1}], v1, s[20:23], s54 offen offset:{(32*j+8*q)*2}")
                    if R2:
                        for q in range(4):
                            a(f"buffer_load_dwordx2 v[{e0+8+2*q}:{e0+8+2*q+1}], v1, s[24:27], s54 offen offset:{(32*j+8*q)*2}")
                    a("s_waitcnt vmcnt(0)")
                for q in range(4):
                    r = c + 4 * q
                    for t in range(4):
                        bf16r(a, r + t, r + t)
                    if epi == 'gelu':
                        for t in range(4):
                            gelu_inplace(a, r + t, e0)
                    elif epi in ('res1', 'res2'):
                        for t in range(4):
                            src = e0 + 2 * q + (t >> 1)
                            if t & 1:
                                a(f"v_and_b32 v{vGA}, 0xffff0000, v{src}")
                            else:
                                a(f"v_lshlrev_b32 v{vGA}, 16, v{src}")
                            a(f"v_add_f32 v{r+t}, v{r+t}, v{vGA}")
                            if epi == 'res2':
                                bf16r(a, r + t, r + t)
                                src = e0 + 8 + 2 * q + (t >> 1)
                                if t & 1:
                                    a(f"v_and_b32 v{vGA}, 0xffff0000, v{src}")
                                else:
                                    a(f"v_lshlrev_b32 v{vGA}, 16, v{src}")
                                a(f"v_add_f32 v{r+t}, v{r+t}, v{vGA}")
                    a(f"v_cvt_pk_bf16_f32 v{r}, v{r}, v{r+1}")
                    a(f"v_cvt_pk_bf16_f32 v{r+1}, v{r+2}, v{r+3}")
                    a(f"buffer_store_dwordx2 v[{r}:{r+1}], v1, s[16:19], s54 offen offset:{(32*j+8*q)*2}")
    a.label(LEND)
    a("s_endpgm")
    a.end(name, (ntiles, 1, 1), (256, 1, 1), LDS, nvg)

def f32bits(x):
    import struct
    return struct.unpack("<I", struct.pack("<f", x))[0]

def attn_kernel(a, name):
    KSTR, VSTR = 576, 528
    KREG = 32 * KSTR
    STG = 28672
    T = 8.0
    a.begin(name)
    a("s_cmp_ge_u32 s2, 256")
    LEND = a.newlabel("AEND")
    a(f"s_cbranch_scc1 {LEND}")
    a(f"s_load_dwordx2 s[6:7], s[0:1], {KA['ws']}")
    a("s_lshr_b32 s30, s2, 3")
    a("s_and_b32 s31, s2, 7")
    a("v_lshrrev_b32 v1, 6, v0")
    a("s_nop 0")
    a("v_readfirstlane_b32 s32, v1")
    a("v_and_b32 v2, 63, v0")
    a("s_waitcnt lgkmcnt(0)")
    srd(a, 8, 6, LAY['QKVT'], 1728 * 4096)
    srd(a, 12, 6, LAY['O'], SZ)
    vS = [10, 26]
    vO = 42
    vP = 58
    vKf = 66
    vVf = 74
    vQf = 82
    vSt = 90
    vG = 102
    vL = 105
    vK, vV = 108, 109
    vM, vTh = 110, 111
    vK0, vV0 = 120, 121
    vt = 112
    nvg = 124
    a("v_mov_b32 v4, 0"); a("v_mov_b32 v5, 0"); a("v_mov_b32 v6, 0"); a("v_mov_b32 v7, 0")
    a("v_lshlrev_b32 v3, 4, v0")
    a(f"v_add_u32 v3, {18*KSTR}, v3")
    a("v_cmp_gt_u32 vcc, 504, v0")
    a("s_and_saveexec_b64 s[34:35], vcc")
    a("ds_write_b128 v3, v[4:7]")
    a(f"ds_write_b128 v3, v[4:7] offset:{STG}")
    a("s_mov_b64 exec, s[34:35]")
    a("v_mov_b32 v4, 0x3f803f80"); a("v_mov_b32 v5, 0x3f803f80"); a("v_mov_b32 v6, 0x3f803f80"); a("v_mov_b32 v7, 0x3f803f80")
    a("v_lshlrev_b32 v3, 4, v0")
    a(f"v_add_u32 v3, {KREG + 18*VSTR}, v3")
    a("v_cmp_gt_u32 vcc, 32, v0")
    a("s_and_saveexec_b64 s[34:35], vcc")
    a("ds_write_b128 v3, v[4:7]")
    a(f"ds_write_b128 v3, v[4:7] offset:{STG}")
    a("s_mov_b64 exec, s[34:35]")
    a("s_mul_i32 s33, s30, 18")
    for i in range(3):
        a(f"v_add_u32 v3, {512*i}, v0")
        a("v_cmp_le_u32 vcc, 576, v3")
        a("v_subrev_u32 v4, 576, v3")
        a("s_nop 0")
        a("v_cndmask_b32 v4, v3, v4, vcc")
        a("v_cndmask_b32_e64 v5, 0, 1, vcc")
        a("v_lshrrev_b32 v6, 5, v4")
        a("v_and_b32 v7, 31, v4")
        a("v_mul_u32_u24 v8, 576, v5")
        a("v_add3_u32 v8, v8, v6, s33")
        a("v_add_u32 v8, 576, v8")
        a("v_lshlrev_b32 v8, 12, v8")
        a(f"v_lshl_add_u32 v{vG+i}, v7, 4, v8")
        a(f"v_mul_u32_u24 v8, {KSTR}, v6")
        a(f"v_mul_u32_u24 v9, {VSTR}, v6")
        a(f"v_add_u32 v9, {KREG}, v9")
        a("v_cndmask_b32 v8, v8, v9, vcc")
        a(f"v_lshl_add_u32 v{vL+i}, v7, 4, v8")
    def stage_loads():
        a(f"buffer_load_dwordx4 v[{vSt}:{vSt+3}], v{vG}, s[8:11], s40 offen")
        a(f"buffer_load_dwordx4 v[{vSt+4}:{vSt+7}], v{vG+1}, s[8:11], s40 offen")
        a(f"buffer_load_dwordx4 v[{vSt+8}:{vSt+11}], v{vG+2}, s[8:11], s40 offen")
    def stage_writes(sbase):
        a(f"v_add_u32 v3, s{sbase}, v{vL}")
        a(f"ds_write_b128 v3, v[{vSt}:{vSt+3}]")
        a(f"v_add_u32 v4, s{sbase}, v{vL+1}")
        a(f"ds_write_b128 v4, v[{vSt+4}:{vSt+7}]")
        LS = a.newlabel("AW")
        a("s_cmp_ge_u32 s32, 2")
        a(f"s_cbranch_scc1 {LS}")
        a(f"v_add_u32 v5, s{sbase}, v{vL+2}")
        a(f"ds_write_b128 v5, v[{vSt+8}:{vSt+11}]")
        a.label(LS)
    a("s_cmp_ge_u32 s32, 2")
    a("s_cselect_b64 vcc, -1, 0")
    a(f"v_mov_b32 v3, {BIG}")
    a("s_nop 0")
    a(f"v_cndmask_b32 v{vG+2}, v{vG+2}, v3, vcc")
    a("v_and_b32 v3, 31, v2")
    a("s_lshl_b32 s36, s31, 8")
    a("s_lshl_b32 s37, s32, 5")
    a("s_add_u32 s36, s36, s37")
    a("v_add_u32 v3, s36, v3")
    a("v_lshrrev_b32 v4, 5, v2")
    a("v_lshl_add_u32 v5, v4, 3, s33")
    a("v_lshlrev_b32 v5, 12, v5")
    a("v_lshl_add_u32 v5, v3, 1, v5")
    for j in range(8):
        a(f"buffer_load_ushort v{vt+j}, v5, s[8:11], 0 offen")
        a("v_add_u32 v5, 0x1000, v5")
    a("v_add_u32 v5, 16, s33")
    a("v_lshlrev_b32 v5, 12, v5")
    a("v_lshl_add_u32 v5, v3, 1, v5")
    a("v_cmp_eq_u32 vcc, 1, v4")
    a(f"v_mov_b32 v6, {BIG}")
    a("s_nop 0")
    a("v_cndmask_b32 v5, v5, v6, vcc")
    a("buffer_load_ushort v6, v5, s[8:11], 0 offen")
    a("buffer_load_ushort v7, v5, s[8:11], 0 offen offset:4095")
    a("s_waitcnt vmcnt(0)")
    a.lines.pop(); a.lines.pop()
    a("v_add_u32 v5, 0x1000, v5")
    a("buffer_load_ushort v7, v5, s[8:11], 0 offen")
    a("s_waitcnt vmcnt(0)")
    for j in range(4):
        a(f"v_lshl_or_b32 v{vQf+j}, v{vt+2*j+1}, 16, v{vt+2*j}")
    a(f"v_lshl_or_b32 v{vQf+4}, v7, 16, v6")
    for j in range(5, 8):
        a(f"v_mov_b32 v{vQf+j}, 0")
    a("v_lshrrev_b32 v3, 5, v2")
    a("v_bfe_u32 v4, v2, 2, 2")
    a("v_lshl_add_u32 v3, v3, 3, v4")
    a(f"v_mul_u32_u24 v{vK}, {KSTR}, v3")
    a("v_bfe_u32 v3, v2, 4, 1")
    a("v_and_b32 v4, 3, v2")
    a("v_lshl_add_u32 v3, v3, 2, v4")
    a(f"v_lshl_add_u32 v{vK}, v3, 3, v{vK}")
    a("v_and_b32 v3, 31, v2")
    a("v_min_u32 v3, 18, v3")
    a(f"v_mul_u32_u24 v{vV}, {VSTR}, v3")
    a("v_lshrrev_b32 v3, 5, v2")
    a(f"v_lshl_add_u32 v{vV}, v3, 4, v{vV}")
    a(f"v_add_u32 v{vV}, {KREG}, v{vV}")
    a(f"v_mov_b32 v{vK0}, v{vK}")
    a(f"v_mov_b32 v{vV0}, v{vV}")
    a(f"v_mov_b32 v{vM}, 0xf149f2ca")
    a(f"v_mov_b32 v{vTh}, 0xf149f2ca")
    for i in range(16):
        a(f"v_mov_b32 v{vO+i}, 0")
    a(f"v_mov_b32 v{vKf+6}, 0"); a(f"v_mov_b32 v{vKf+7}, 0")
    a("s_mov_b32 s40, 0")
    stage_loads()
    a("s_waitcnt vmcnt(0)")
    a("s_mov_b32 s41, 0")
    stage_writes(41)
    a("s_waitcnt lgkmcnt(0)")
    a("s_barrier")
    a("s_mov_b32 s42, 0")
    LOOP = a.newlabel("ALOOP")
    a.label(LOOP)
    LNP = a.newlabel("ANP")
    a("s_cmp_ge_u32 s42, 7")
    a(f"s_cbranch_scc1 {LNP}")
    a("s_add_u32 s40, s40, 512")
    stage_loads()
    a.label(LNP)
    def kread(kb):
        a(f"ds_read_b64_tr_b16 v[{vKf}:{vKf+1}], v{vK} offset:{64*kb}")
        a(f"ds_read_b64_tr_b16 v[{vKf+2}:{vKf+3}], v{vK} offset:{64*kb + 4*KSTR}")
        a(f"ds_read_b64_tr_b16 v[{vKf+4}:{vKf+5}], v{vK} offset:{64*kb + 16*KSTR}")
    def vread(kb):
        a(f"ds_read_b128 v[{vVf}:{vVf+3}], v{vV} offset:{64*kb}")
        a(f"ds_read_b128 v[{vVf+4}:{vVf+7}], v{vV} offset:{64*kb+32}")
    def smfma(sb):
        s = vS[sb]
        a(f"v_mfma_f32_32x32x16_bf16 v[{s}:{s+15}], v[{vKf}:{vKf+3}], v[{vQf}:{vQf+3}], 0")
        a(f"v_mfma_f32_32x32x16_bf16 v[{s}:{s+15}], v[{vKf+4}:{vKf+7}], v[{vQf+4}:{vQf+7}], v[{s}:{s+15}]")
    kread(0)
    a("s_waitcnt lgkmcnt(0)")
    smfma(0)
    for kb in range(8):
        sb = kb & 1
        s = vS[sb]
        vread(kb)
        if kb < 7:
            kread(kb + 1)
            a("s_waitcnt lgkmcnt(0)")
            smfma(sb ^ 1)
        else:
            a("s_nop 7"); a("s_nop 7")
        a(f"v_max3_f32 v{vt}, v{s}, v{s+1}, v{s+2}")
        for i in range(3, 15, 2):
            a(f"v_max3_f32 v{vt}, v{vt}, v{s+i}, v{s+i+1}")
        a(f"v_max_f32 v{vt}, v{vt}, v{s+15}")
        a(f"v_cmp_gt_f32 vcc, v{vt}, v{vTh}")
        LR, LC = a.newlabel("ARARE"), a.newlabel("ACOM")
        a("s_nop 1")
        a(f"s_cbranch_vccz {LC}")
        a("s_nop 15"); a("s_nop 15")
        a(f"v_mov_b32 v{vt+1}, v{vt}")
        a(f"v_mov_b32 v{vt+2}, v{vt}")
        a("s_nop 1")
        a(f"v_permlane32_swap_b32 v{vt+1}, v{vt+2}")
        a("s_nop 1")
        a(f"v_max3_f32 v{vt+1}, v{vt+1}, v{vt+2}, v{vM}")
        a(f"v_sub_f32 v{vt+2}, v{vM}, v{vt+1}")
        a(f"v_exp_f32 v{vt+2}, v{vt+2}")
        a(f"v_mov_b32 v{vM}, v{vt+1}")
        a(f"v_add_f32 v{vTh}, {T}, v{vt+1}")
        for i in range(16):
            a(f"v_mul_f32 v{vO+i}, v{vO+i}, v{vt+2}")
        a("s_nop 1")
        a.label(LC)
        for i in range(16):
            a(f"v_sub_f32 v{s+i}, v{s+i}, v{vM}")
        for i in range(16):
            a(f"v_exp_f32 v{s+i}, v{s+i}")
        a("s_nop 0")
        for i in range(8):
            a(f"v_cvt_pk_bf16_f32 v{vP+i}, v{s+2*i}, v{s+2*i+1}")
        a("s_waitcnt lgkmcnt(0)")
        a("s_nop 1")
        a(f"v_mfma_f32_32x32x16_bf16 v[{vO}:{vO+15}], v[{vVf}:{vVf+3}], v[{vP}:{vP+3}], v[{vO}:{vO+15}]")
        a(f"v_mfma_f32_32x32x16_bf16 v[{vO}:{vO+15}], v[{vVf+4}:{vVf+7}], v[{vP+4}:{vP+7}], v[{vO}:{vO+15}]")
    LFIN = a.newlabel("AFIN")
    a("s_cmp_ge_u32 s42, 7")
    a(f"s_cbranch_scc1 {LFIN}")
    a("s_waitcnt vmcnt(0)")
    a("s_xor_b32 s41, s41, " + str(STG))
    stage_writes(41)
    a(f"v_add_u32 v{vK}, s41, v{vK0}")
    a(f"v_add_u32 v{vV}, s41, v{vV0}")
    a("s_waitcnt lgkmcnt(0)")
    a("s_barrier")
    a("s_add_u32 s42, s42, 1")
    a(f"s_branch {LOOP}")
    a.label(LFIN)
    a("s_nop 15"); a("s_nop 15")
    a(f"v_mov_b32 v{vt}, v{vO+10}")
    a(f"v_mov_b32 v{vt+1}, v{vO+10}")
    a("s_nop 1")
    a(f"v_permlane32_swap_b32 v{vt}, v{vt+1}")
    a("s_nop 1")
    a(f"v_rcp_f32 v{vt}, v{vt}")
    a("s_nop 0")
    for i in range(10):
        a(f"v_mul_f32 v{vO+i}, v{vO+i}, v{vt}")
    for i in range(5):
        a(f"v_cvt_pk_bf16_f32 v{vP+i}, v{vO+2*i}, v{vO+2*i+1}")
    a("v_and_b32 v3, 31, v2")
    a("v_add_u32 v3, s36, v3")
    a("s_movk_i32 s38, 1152")
    a("v_mul_lo_u32 v3, v3, s38")
    a("s_mul_i32 s38, s30, 36")
    a("v_add_u32 v3, s38, v3")
    a("v_lshrrev_b32 v4, 5, v2")
    a("v_lshl_add_u32 v3, v4, 3, v3")
    a(f"buffer_store_dwordx2 v[{vP}:{vP+1}], v3, s[12:15], 0 offen")
    a(f"buffer_store_dwordx2 v[{vP+2}:{vP+3}], v3, s[12:15], 0 offen offset:16")
    a("v_cmp_eq_u32 vcc, 1, v4")
    a(f"v_mov_b32 v5, {BIG}")
    a("s_nop 0")
    a("v_cndmask_b32 v3, v3, v5, vcc")
    a(f"buffer_store_dword v{vP+4}, v3, s[12:15], 0 offen offset:32")
    a.label(LEND)
    a("s_endpgm")
    a.end(name, (256, 1, 1), (512, 1, 1), 2 * STG, nvg)

def build():
    a = Asm()
    ln_kernel(a, "ln1_kernel", ('arg', 'x'), 'XN')
    gemm_kernel(a, "qkv_kernel", 1728, 576, ('ws', 'XN'), 'wqkv', 'qkvt', C=('ws', 'QKVT'))
    attn_kernel(a, "attn_kernel")
    gemm_kernel(a, "wo_kernel", 576, 576, ('ws', 'O'), 'wo', 'res1', C=('ws', 'H'), R1=('arg', 'x'))
    ln_kernel(a, "ln2_kernel", ('ws', 'H'), 'XP', 'XPP')
    gemm_kernel(a, "w1_kernel", 576, 576, ('ws', 'XPP'), 'w1', 'gelu', C=('ws', 'HH'))
    gemm_kernel(a, "w2_kernel", 576, 576, ('ws', 'HH'), 'w2', 'res1', C=('ws', 'X1'), R1=('ws', 'XP'), shift=True)
    ln_kernel(a, "ln3_kernel", ('ws', 'X1'), 'X1N')
    gemm_kernel(a, "w3_kernel", 4608, 576, ('ws', 'X1N'), 'w3', 'gelu', BN=128, C=('ws', 'G'))
    gemm_kernel(a, "w4_kernel", 576, 4608, ('ws', 'G'), 'w4', 'res2', C=('arg', 'out'), R1=('ws', 'X1'), R2=('ws', 'H'))
    hdr = ["; generated by dev/gen.py"]
    for (name, g, b, lds, vg, sg) in a.kernels:
        hdr.append(f"; @launch kernel={name} grid=({g[0]},{g[1]},{g[2]}) block=({b[0]},{b[1]},{b[2]}) lds={lds}")
    out = hdr + ['.amdgcn_target "amdgcn-amd-amdhsa--gfx950"', ".text"] + a.lines
    out.append('.section .rodata,"a"')
    for (name, g, b, lds, vg, sg) in a.kernels:
        vg4 = (vg + 3) // 4 * 4
        out += [".p2align 6", f".amdhsa_kernel {name}",
                f"  .amdhsa_next_free_vgpr {vg}", f"  .amdhsa_next_free_sgpr {sg}",
                f"  .amdhsa_accum_offset {vg4}", "  .amdhsa_group_segment_fixed_size 0",
                "  .amdhsa_kernarg_size 88", "  .amdhsa_user_sgpr_count 2",
                "  .amdhsa_user_sgpr_kernarg_segment_ptr 1", "  .amdhsa_system_sgpr_workgroup_id_x 1",
                ".end_amdhsa_kernel"]
    return "\n".join(out) + "\n"

if __name__ == "__main__":
    s = build()
    open("sequential_preLN__mha_block__mixer_s_mlp__prompt.s", "w").write(s)
    json.dump(LAY, open("layout.json", "w"))
    print("ok", len(s))
```

```python
import json, sys, math

S, D, H, DH, F = 2048, 576, 32, 18, 4608
KA = dict(x=0, wqkv=8, wo=16, bx=24, w1=32, w2=40, w3=48, w4=56, out=64, dbg=72, ws=80)
SZ = S * D * 2
LAY = dict(XN=0, QKVT=0x400000, O=0xC00000, H=0x1000000, XP=0x1400000, XPP=0x1800000,
           HH=0x1C00000, X1=0x2000000, X1N=0x2400000, G=0x2800000)
BIG = 0x7fffff00

class Asm:
    def __init__(self):
        self.lines = []
        self.kernels = []
        self.uid = 0
    def __call__(self, s):
        self.lines.append("    " + s)
    def label(self, l):
        self.lines.append(l + ":")
    def newlabel(self, p="L"):
        self.uid += 1
        return f"{p}_{self.uid}"
    def begin(self, name):
        self.lines.append(f".globl {name}")
        self.lines.append(".p2align 8")
        self.lines.append(f".type {name},@function")
        self.lines.append(f"{name}:")
    def end(self, name, grid, block, lds, vgpr, sgpr=100):
        self.kernels.append((name, grid, block, lds, vgpr, sgpr))

def srd(a, sd, plo, off, nbytes):
    if off:
        a(f"s_add_u32 s{sd}, s{plo}, {off}")
        a(f"s_addc_u32 s{sd+1}, s{plo+1}, 0")
    else:
        a(f"s_mov_b32 s{sd}, s{plo}")
        a(f"s_mov_b32 s{sd+1}, s{plo+1}")
    a(f"s_mov_b32 s{sd+2}, {nbytes}")
    a(f"s_mov_b32 s{sd+3}, 0x00020000")

def wave_sum(a, v, sdst):
    for sh in (1, 2, 4, 8):
        a("s_nop 1")
        a(f"v_add_f32_dpp v{v}, v{v}, v{v} row_shr:{sh} row_mask:0xf bank_mask:0xf bound_ctrl:0")
    a("s_nop 1")
    a(f"v_add_f32_dpp v{v}, v{v}, v{v} row_bcast:15 row_mask:0xa bank_mask:0xf")
    a("s_nop 1")
    a(f"v_add_f32_dpp v{v}, v{v}, v{v} row_bcast:31 row_mask:0xc bank_mask:0xf")
    a("s_nop 1")
    a(f"v_readlane_b32 s{sdst}, v{v}, 63")
    a("s_nop 3")

def bf16r(a, vd, vs):
    a(f"v_cvt_pk_bf16_f32 v{vd}, v{vs}, v{vs}")
    a(f"v_lshlrev_b32 v{vd}, 16, v{vd}")

def ln_body(a, X, T, MASK):
    t0, t1, t2 = T, T + 1, T + 2
    a(f"v_add_f32 v{t0}, v{X[0]}, v{X[1]}")
    for i in range(2, 10):
        a(f"v_add_f32 v{t0}, v{t0}, v{X[i]}")
    wave_sum(a, t0, 20)
    a(f"v_mov_b32 v{t1}, s20")
    a(f"v_mul_f32 v{t1}, {1.0/576.0!r}, v{t1}")
    a(f"v_sub_f32 v{t2}, v{X[0]}, v{t1}")
    a(f"v_mul_f32 v{t0}, v{t2}, v{t2}")
    for i in range(1, 10):
        a(f"v_sub_f32 v{t2}, v{X[i]}, v{t1}")
        if i >= 8:
            a(f"v_mul_f32 v{t2}, v{t2}, v{MASK}")
        a(f"v_fmac_f32 v{t0}, v{t2}, v{t2}")
    wave_sum(a, t0, 21)
    a(f"v_mov_b32 v{t0}, s21")
    a(f"v_mul_f32 v{t0}, {1.0/576.0!r}, v{t0}")
    bf16r(a, t0, t0)
    a(f"v_add_f32 v{t0}, {1e-5!r}, v{t0}")
    bf16r(a, t0, t0)
    a(f"v_sqrt_f32 v{t0}, v{t0}")
    a("s_nop 0")
    bf16r(a, t0, t0)
    a(f"v_rcp_f32 v{t0}, v{t0}")
    bf16r(a, t1, t1)
    for i in range(10):
        a(f"v_sub_f32 v{X[i]}, v{X[i]}, v{t1}")
        bf16r(a, X[i], X[i])
        a(f"v_mul_f32 v{X[i]}, v{X[i]}, v{t0}")
        bf16r(a, X[i], X[i])

def ln_kernel(a, name, src, dst1, dst2=None):
    a.begin(name)
    a("s_cmp_ge_u32 s2, 512")
    L = a.newlabel("LNEND")
    a(f"s_cbranch_scc1 {L}")
    a(f"s_load_dwordx2 s[6:7], s[0:1], {KA['ws']}")
    if src[0] == 'arg':
        a(f"s_load_dwordx2 s[4:5], s[0:1], {KA[src[1]]}")
    a("s_waitcnt lgkmcnt(0)")
    if src[0] == 'arg':
        srd(a, 8, 4, 0, SZ)
    else:
        srd(a, 8, 6, LAY[src[1]], SZ)
    srd(a, 12, 6, LAY[dst1], SZ)
    if dst2:
        srd(a, 16, 6, LAY[dst2], SZ)
    a("v_lshrrev_b32 v1, 6, v0")
    a("v_and_b32 v2, 63, v0")
    a("s_lshl_b32 s3, s2, 2")
    a("v_add_u32 v1, s3, v1")
    a("s_movk_i32 s20, 1152")
    a("v_mul_lo_u32 v1, v1, s20")
    a("v_lshl_add_u32 v3, v2, 2, v1")
    a("v_cmp_gt_u32 vcc, 32, v2")
    a(f"v_mov_b32 v4, {BIG}")
    a("s_nop 1")
    a("v_cndmask_b32 v4, v4, v3, vcc")
    a("v_cndmask_b32_e64 v5, 0, 1.0, vcc")
    for i in range(4):
        a(f"buffer_load_dword v{10+i}, v3, s[8:11], 0 offen offset:{256*i}")
    a("buffer_load_dword v14, v4, s[8:11], 0 offen offset:1024")
    a("s_waitcnt vmcnt(0)")
    X = list(range(20, 30))
    for i in range(5):
        a(f"v_lshlrev_b32 v{20+2*i}, 16, v{10+i}")
        a(f"v_and_b32 v{21+2*i}, 0xffff0000, v{10+i}")
    ln_body(a, X, 6, 5)
    for i in range(5):
        a(f"v_cvt_pk_bf16_f32 v{10+i}, v{20+2*i}, v{21+2*i}")
    for i in range(4):
        a(f"buffer_store_dword v{10+i}, v3, s[12:15], 0 offen offset:{256*i}")
    a("buffer_store_dword v14, v4, s[12:15], 0 offen offset:1024")
    if dst2:
        ln_body(a, X, 6, 5)
        for i in range(5):
            a(f"v_cvt_pk_bf16_f32 v{30+i}, v{20+2*i}, v{21+2*i}")
        for i in range(4):
            a(f"buffer_store_dword v{30+i}, v3, s[16:19], 0 offen offset:{256*i}")
        a("buffer_store_dword v34, v4, s[16:19], 0 offen offset:1024")
    a.label(L)
    a("s_endpgm")
    a.end(name, (512, 1, 1), (256, 1, 1), 0, 40)

def magic_div(d):
    return (2**32 + d - 1) // d

def gelu_inplace(a, v, t):
    c0 = math.sqrt(2.0 / math.pi)
    k1 = -2.0 * math.log2(math.e) * c0
    k2 = k1 * 0.044715
    a(f"v_mul_f32 v{t}, v{v}, v{v}")
    a(f"v_mov_b32 v{t+1}, {k1!r}")
    a(f"v_fmac_f32 v{t+1}, {k2!r}, v{t}")
    a(f"v_mul_f32 v{t}, v{t+1}, v{v}")
    a(f"v_exp_f32 v{t}, v{t}")
    a("s_nop 0")
    a(f"v_add_f32 v{t}, 1.0, v{t}")
    a(f"v_rcp_f32 v{t}, v{t}")
    a("s_nop 0")
    a(f"v_mul_f32 v{v}, v{v}, v{t}")

def gemm_kernel(a, name, N, K, A, B, epi, BM=128, BN=64, lda=None, shift=False, C=None, R1=None, R2=None):
    M = S
    lda = lda or K
    lda2, ldb2 = lda * 2, N * 2
    tiles_n, tiles_m = N // BN, M // BM
    ntiles = tiles_n * tiles_m
    WN = 2; WM = 2
    TM, TN = BM // WM, BN // WN
    TI, TJ = TM // 32, TN // 32
    ASTR = 144
    BSTR = BN * 2 + 64
    ABUF = BM * ASTR
    BBUF = 64 * BSTR
    LDSB0 = 2 * ABUF
    LDS = 2 * ABUF + 2 * BBUF
    AL = BM * 8 // 256
    BL = BN * 8 * 64 // 8 // 256 // 8 * 8 // 8 if False else (64 * BN // 8) // 256
    bchunks = BN // 8
    brows = 256 // bchunks
    nk = K // 64
    swapped = epi != 'qkvt'
    vAst = 4
    vBst = vAst + 4 * AL
    vAf = vBst + 4 * BL
    vBf = vAf + 2 * TI * 4
    vAcc = vBf + 2 * TJ * 4
    vT = vAcc + TI * TJ * 16
    vGA, vGB, vLA, vLB, vRA, vRB = vT, vT + 1, vT + 2, vT + 3, vT + 4, vT + 5
    vGAs = vT + 6
    vKC = vGAs + AL
    vE = (vKC + 2) // 2 * 2
    nvg = vE + 16
    a.begin(name)
    a(f"s_cmp_ge_u32 s2, {ntiles}")
    LEND = a.newlabel("GEND")
    a(f"s_cbranch_scc1 {LEND}")
    a(f"s_load_dwordx2 s[6:7], s[0:1], {KA['ws']}")
    a(f"s_load_dwordx2 s[4:5], s[0:1], {KA[B]}")
    if C[0] == 'arg' or (R1 and R1[0] == 'arg'):
        key = C[1] if C[0] == 'arg' else R1[1]
        a(f"s_load_dwordx2 s[28:29], s[0:1], {KA[key]}")
    a(f"s_mov_b32 s30, {magic_div(tiles_n)}")
    a("s_mul_hi_u32 s31, s2, s30")
    a(f"s_mul_i32 s32, s31, {tiles_n}")
    a("s_sub_u32 s32, s2, s32")
    a(f"s_mul_i32 s33, s31, {BM}")
    a(f"s_mul_i32 s34, s32, {BN}")
    a("s_waitcnt lgkmcnt(0)")
    asz = M * lda2
    srd(a, 8, 6, LAY[A[1]], asz)
    srd(a, 12, 4, 0, K * ldb2)
    if C[0] == 'ws':
        srd(a, 16, 6, LAY[C[1]], (1728 * 4096) if epi == 'qkvt' else M * N * 2)
    else:
        srd(a, 16, 28, 0, M * N * 2)
    if R1:
        if R1[0] == 'ws':
            srd(a, 20, 6, LAY[R1[1]], SZ)
        else:
            srd(a, 20, 28, 0, SZ)
    if R2:
        srd(a, 24, 6, LAY[R2[1]], SZ)
    a("v_lshrrev_b32 v1, 6, v0")
    a("s_nop 0")
    a("v_readfirstlane_b32 s35, v1")
    a("v_and_b32 v2, 63, v0")
    a("s_lshr_b32 s36, s35, 1")
    a("s_and_b32 s37, s35, 1")
    a(f"v_lshrrev_b32 v1, 3, v0")
    a(f"v_and_b32 v{vKC}, 7, v0")
    a(f"v_add_u32 v3, s33, v1")
    a(f"s_mov_b32 s38, {lda2}")
    a(f"v_mul_lo_u32 v{vGA}, v3, s38")
    a(f"v_lshl_add_u32 v{vGA}, v{vKC}, 4, v{vGA}")
    a(f"s_movk_i32 s38, {ASTR}")
    a(f"v_mul_lo_u32 v{vLA}, v1, s38")
    a(f"v_lshl_add_u32 v{vLA}, v{vKC}, 4, v{vLA}")
    if shift:
        a(f"v_lshlrev_b32 v{vKC}, 3, v{vKC}")
    lg = int(math.log2(bchunks))
    a(f"v_lshrrev_b32 v1, {lg}, v0")
    a(f"v_and_b32 v3, {bchunks-1}, v0")
    a(f"s_mov_b32 s38, {ldb2}")
    a(f"v_mul_lo_u32 v{vGB}, v1, s38")
    a(f"v_lshl_add_u32 v{vGB}, v3, 4, v{vGB}")
    a(f"s_lshl_b32 s38, s34, 1")
    a(f"v_add_u32 v{vGB}, s38, v{vGB}")
    a(f"s_movk_i32 s38, {BSTR}")
    a(f"v_mul_lo_u32 v{vLB}, v1, s38")
    a(f"v_lshl_add_u32 v{vLB}, v3, 4, v{vLB}")
    a(f"v_add_u32 v{vLB}, {LDSB0}, v{vLB}")
    a("v_and_b32 v1, 31, v2")
    a(f"s_mul_i32 s38, s36, {TM}")
    a("v_add_u32 v1, s38, v1")
    a(f"s_movk_i32 s38, {ASTR}")
    a(f"v_mul_lo_u32 v{vRA}, v1, s38")
    a("v_lshrrev_b32 v3, 5, v2")
    a(f"v_lshl_add_u32 v{vRA}, v3, 4, v{vRA}")
    a("v_lshrrev_b32 v1, 5, v2")
    a("v_bfe_u32 v3, v2, 2, 2")
    a("v_lshl_add_u32 v1, v1, 3, v3")
    a(f"s_movk_i32 s38, {BSTR}")
    a(f"v_mul_lo_u32 v{vRB}, v1, s38")
    a("v_bfe_u32 v1, v2, 4, 1")
    a("v_and_b32 v3, 3, v2")
    a("v_lshl_add_u32 v1, v1, 2, v3")
    a(f"v_lshl_add_u32 v{vRB}, v1, 3, v{vRB}")
    a(f"s_mul_i32 s38, s37, {TN*2}")
    a(f"s_add_u32 s38, s38, {LDSB0}")
    a(f"v_add_u32 v{vRB}, s38, v{vRB}")
    sA0, sB0 = 40, 44
    for i in range(AL):
        a(f"s_mov_b32 s{sA0+i}, {i*32*lda2}")
    for i in range(BL):
        a(f"s_mov_b32 s{sB0+i}, {i*brows*ldb2}")
    for i in range(TI * TJ * 16):
        a(f"v_mov_b32 v{vAcc+i}, 0")

    def shift_offsets(kstep_sgpr):
        a(f"v_add_u32 v1, s{kstep_sgpr}, v{vKC}")
        a(f"v_mov_b32 v3, {-1*lda2}")
        a("v_cmp_le_u32 vcc, 144, v1")
        a(f"v_mov_b32 v{vE}, {1*lda2}")
        a("s_nop 0")
        a(f"v_cndmask_b32 v3, v3, v{vE}, vcc")
        a("v_cmp_le_u32 vcc, 288, v1")
        a(f"v_mov_b32 v{vE}, {-2*lda2}")
        a("s_nop 0")
        a(f"v_cndmask_b32 v3, v3, v{vE}, vcc")
        a("v_cmp_le_u32 vcc, 432, v1")
        a(f"v_mov_b32 v{vE}, {2*lda2}")
        a("s_nop 0")
        a(f"v_cndmask_b32 v3, v3, v{vE}, vcc")
        a(f"v_add_u32 v3, v3, v{vGA}")
        a(f"v_lshl_add_u32 v3, s{kstep_sgpr}, 1, v3")
        for i in range(AL):
            a(f"v_add_u32 v{vGAs+i}, {i*32*lda2}, v3")

    def issue_loads():
        for i in range(AL):
            if shift:
                a(f"buffer_load_dwordx4 v[{vAst+4*i}:{vAst+4*i+3}], v{vGAs+i}, s[8:11], 0 offen")
            else:
                a(f"buffer_load_dwordx4 v[{vAst+4*i}:{vAst+4*i+3}], v{vGA}, s[8:11], s{sA0+i} offen")
        for i in range(BL):
            a(f"buffer_load_dwordx4 v[{vBst+4*i}:{vBst+4*i+3}], v{vGB}, s[12:15], s{sB0+i} offen")
    def advance():
        for i in range(AL):
            a(f"s_add_u32 s{sA0+i}, s{sA0+i}, 128")
        for i in range(BL):
            a(f"s_add_u32 s{sB0+i}, s{sB0+i}, {64*ldb2}")
    def write_lds(buf):
        for i in range(AL):
            a(f"ds_write_b128 v{vLA}, v[{vAst+4*i}:{vAst+4*i+3}] offset:{buf*ABUF + i*32*ASTR}")
        for i in range(BL):
            a(f"ds_write_b128 v{vLB}, v[{vBst+4*i}:{vBst+4*i+3}] offset:{buf*BBUF + i*brows*BSTR}")
    def read_frags(buf, kk, st):
        for i in range(TI):
            r = vAf + (st * TI + i) * 4
            a(f"ds_read_b128 v[{r}:{r+3}], v{vRA} offset:{buf*ABUF + i*32*ASTR + kk*32}")
        for j in range(TJ):
            r = vBf + (st * TJ + j) * 4
            a(f"ds_read_b64_tr_b16 v[{r}:{r+1}], v{vRB} offset:{buf*BBUF + (kk*16)*BSTR + j*64}")
            a(f"ds_read_b64_tr_b16 v[{r+2}:{r+3}], v{vRB} offset:{buf*BBUF + (kk*16+4)*BSTR + j*64}")
    nreads = TI + 2 * TJ
    def compute(buf):
        read_frags(buf, 0, 0)
        for kk in range(4):
            st = kk & 1
            if kk < 3:
                read_frags(buf, kk + 1, st ^ 1)
                a(f"s_waitcnt lgkmcnt({nreads})")
            else:
                a("s_waitcnt lgkmcnt(0)")
            for i in range(TI):
                for j in range(TJ):
                    ra = vAf + (st * TI + i) * 4
                    rb = vBf + (st * TJ + j) * 4
                    c = vAcc + (i * TJ + j) * 16
                    if swapped:
                        a(f"v_mfma_f32_32x32x16_bf16 v[{c}:{c+15}], v[{rb}:{rb+3}], v[{ra}:{ra+3}], v[{c}:{c+15}]")
                    else:
                        a(f"v_mfma_f32_32x32x16_bf16 v[{c}:{c+15}], v[{ra}:{ra+3}], v[{rb}:{rb+3}], v[{c}:{c+15}]")

    a("s_mov_b32 s39, 0")
    if shift:
        shift_offsets(39)
    issue_loads()
    a("s_waitcnt vmcnt(0)")
    write_lds(0)
    a("s_waitcnt lgkmcnt(0)")
    a("s_barrier")
    LOOP = a.newlabel("GLOOP")
    a(f"s_mov_b32 s50, 0")
    a.label(LOOP)
    for buf in range(2):
        LSK = a.newlabel("GSK")
        a(f"s_add_u32 s51, s50, 1")
        a(f"s_cmp_ge_u32 s51, {nk}")
        a(f"s_cbranch_scc1 {LSK}")
        advance()
        a("s_add_u32 s39, s39, 64")
        if shift:
            shift_offsets(39)
        issue_loads()
        a.label(LSK)
        compute(buf)
        LSK2 = a.newlabel("GSK")
        a(f"s_cmp_ge_u32 s51, {nk}")
        LDONE = a.newlabel("GDONE")
        a(f"s_cbranch_scc1 {LDONE}")
        a("s_waitcnt vmcnt(0)")
        write_lds(buf ^ 1)
        a("s_waitcnt lgkmcnt(0)")
        a("s_barrier")
        a("s_add_u32 s50, s50, 1")
        if buf == 1:
            a(f"s_branch {LOOP}")
            a.label(LDONE)
        else:
            LD0 = LDONE
    a.label(LD0)
    a("s_nop 15")
    a("s_nop 15")
    gemm_epilogue(a, epi, N, TM, TN, TI, TJ, vAcc, vE, vGA, R1, R2)
    a.label(LEND)
    a("s_endpgm")
    a.end(name, (ntiles, 1, 1), (256, 1, 1), LDS, nvg)

def gemm_epilogue(a, epi, N, TM, TN, TI, TJ, vAcc, vE, vGA, R1, R2):
    e0 = vE
    if epi == 'qkvt':
        a("v_and_b32 v1, 31, v2")
        a(f"s_mul_i32 s38, s37, {TN}")
        a("s_add_u32 s38, s38, s34")
        a("v_add_u32 v1, s38, v1")
        a("v_lshlrev_b32 v1, 12, v1")
        a("v_lshrrev_b32 v3, 5, v2")
        a(f"s_cmp_lt_u32 s34, 576")
        a(f"s_cselect_b32 s52, {hex(f32bits(math.log2(math.e)/math.sqrt(18.0)))}, 1.0")
        a(f"s_cmp_ge_u32 s34, 1152")
        a("s_cselect_b32 s53, 1, 0")
        a(f"s_mul_i32 s38, s36, {TM}")
        a("s_add_u32 s38, s38, s33")
        for i in range(TI):
            for j in range(TJ):
                c = vAcc + (i * TJ + j) * 16
                for q in range(4):
                    r = c + 4 * q
                    a(f"v_mul_f32 v{r}, s52, v{r}")
                    a(f"v_mul_f32 v{r+1}, s52, v{r+1}")
                    a(f"v_mul_f32 v{r+2}, s52, v{r+2}")
                    a(f"v_mul_f32 v{r+3}, s52, v{r+3}")
                    a(f"v_cvt_pk_bf16_f32 v{e0}, v{r}, v{r+1}")
                    a(f"v_cvt_pk_bf16_f32 v{e0+1}, v{r+2}, v{r+3}")
                    a(f"v_lshlrev_b32 v{e0+2}, 3, v3")
                    a(f"v_add_u32 v{e0+2}, {(q&1)*16}, v{e0+2}")
                    a(f"v_lshlrev_b32 v{e0+3}, 4, v3")
                    a(f"v_add_u32 v{e0+3}, {(q&1)*8}, v{e0+3}")
                    a("s_cmp_eq_u32 s53, 1")
                    a("s_cselect_b64 vcc, -1, 0")
                    a("s_nop 0")
                    a(f"v_cndmask_b32 v{e0+2}, v{e0+2}, v{e0+3}, vcc")
                    a(f"v_add_u32 v{e0+2}, v{e0+2}, v1")
                    tokoff = (i * 32 + (q >> 1) * 16) * 2
                    a(f"s_lshl_b32 s54, s38, 1")
                    a(f"s_add_u32 s54, s54, {tokoff + j*32*4096}")
                    a(f"buffer_store_dwordx2 v[{e0}:{e0+1}], v{e0+2}, s[16:19], s54 offen")
                    a("s_nop 1")
    else:
        ldc2 = N * 2
        a("v_and_b32 v1, 31, v2")
        a(f"s_mul_i32 s38, s36, {TM}")
        a("s_add_u32 s38, s38, s33")
        a("v_add_u32 v1, s38, v1")
        a(f"s_mov_b32 s38, {ldc2}")
        a("v_mul_lo_u32 v1, v1, s38")
        a("v_lshrrev_b32 v3, 5, v2")
        a("v_lshl_add_u32 v1, v3, 3, v1")
        a(f"s_mul_i32 s38, s37, {TN*2}")
        a("s_lshl_b32 s52, s34, 1")
        a("s_add_u32 s38, s38, s52")
        a("v_add_u32 v1, s38, v1")
        for i in range(TI):
            a(f"s_mov_b32 s54, {i*32*ldc2}")
            for j in range(TJ):
                c = vAcc + (i * TJ + j) * 16
                if R1:
                    for q in range(4):
                        a(f"buffer_load_dwordx2 v[{e0+2*q}:{e0+2*q+1}], v1, s[20:23], s54 offen offset:{(32*j+8*q)*2}")
                    if R2:
                        for q in range(4):
                            a(f"buffer_load_dwordx2 v[{e0+8+2*q}:{e0+8+2*q+1}], v1, s[24:27], s54 offen offset:{(32*j+8*q)*2}")
                    a("s_waitcnt vmcnt(0)")
                for q in range(4):
                    r = c + 4 * q
                    for t in range(4):
                        bf16r(a, r + t, r + t)
                    if epi == 'gelu':
                        for t in range(4):
                            gelu_inplace(a, r + t, e0)
                    elif epi in ('res1', 'res2'):
                        for t in range(4):
                            src = e0 + 2 * q + (t >> 1)
                            if t & 1:
                                a(f"v_and_b32 v{vGA}, 0xffff0000, v{src}")
                            else:
                                a(f"v_lshlrev_b32 v{vGA}, 16, v{src}")
                            a(f"v_add_f32 v{r+t}, v{r+t}, v{vGA}")
                            if epi == 'res2':
                                bf16r(a, r + t, r + t)
                                src = e0 + 8 + 2 * q + (t >> 1)
                                if t & 1:
                                    a(f"v_and_b32 v{vGA}, 0xffff0000, v{src}")
                                else:
                                    a(f"v_lshlrev_b32 v{vGA}, 16, v{src}")
                                a(f"v_add_f32 v{r+t}, v{r+t}, v{vGA}")
                    a(f"v_cvt_pk_bf16_f32 v{r}, v{r}, v{r+1}")
                    a(f"v_cvt_pk_bf16_f32 v{r+1}, v{r+2}, v{r+3}")
                    a(f"buffer_store_dwordx2 v[{r}:{r+1}], v1, s[16:19], s54 offen offset:{(32*j+8*q)*2}")

def gemm2_kernel(a, name, N, K, A, B, epi, BM=128, BN=64, NS=4, shift=False, C=None, R1=None, R2=None):
    M = S
    lda2, ldb2 = K * 2, N * 2
    tiles_n, tiles_m = N // BN, M // BM
    ntiles = tiles_n * tiles_m
    TM, TN = BM // 2, BN // 2
    TI, TJ = TM // 32, TN // 32
    ABYTES = BM * 128
    STG = ABYTES + 128 * BN
    LDS = NS * STG
    AI = BM // 32
    BI = 2 if BN == 64 else 4
    NL = AI + BI
    nk = K // 64
    swapped = epi != 'qkvt'
    vAf = 4
    vBf = vAf + 2 * TI * 4
    vAcc = vBf + 2 * TJ * 4
    vT = vAcc + TI * TJ * 16
    vGA = vT
    vGB = vT + 2
    vRA0 = vT + 3
    vRB0 = vT + 7
    vRA = vT + 9
    vRB = vT + 13
    vGAs = vT + 15
    vKC = vGAs + AI
    vE = (vKC + 3) // 2 * 2
    nvg = vE + 16
    a.begin(name)
    a(f"s_cmp_ge_u32 s2, {ntiles}")
    LEND = a.newlabel("GEND")
    a(f"s_cbranch_scc1 {LEND}")
    a(f"s_load_dwordx2 s[6:7], s[0:1], {KA['ws']}")
    a(f"s_load_dwordx2 s[4:5], s[0:1], {KA[B]}")
    if C[0] == 'arg' or (R1 and R1[0] == 'arg'):
        key = C[1] if C[0] == 'arg' else R1[1]
        a(f"s_load_dwordx2 s[28:29], s[0:1], {KA[key]}")
    a(f"s_mov_b32 s30, {magic_div(tiles_n)}")
    a("s_mul_hi_u32 s31, s2, s30")
    a(f"s_mul_i32 s32, s31, {tiles_n}")
    a("s_sub_u32 s32, s2, s32")
    a(f"s_mul_i32 s33, s31, {BM}")
    a(f"s_mul_i32 s34, s32, {BN}")
    a("v_lshrrev_b32 v1, 6, v0")
    a("v_and_b32 v2, 63, v0")
    a("v_readfirstlane_b32 s35, v1")
    a("s_waitcnt lgkmcnt(0)")
    srd(a, 8, 6, LAY[A[1]], M * lda2)
    srd(a, 12, 4, 0, K * ldb2)
    if C[0] == 'ws':
        srd(a, 16, 6, LAY[C[1]], (1728 * 4096) if epi == 'qkvt' else M * N * 2)
    else:
        srd(a, 16, 28, 0, M * N * 2)
    if R1:
        if R1[0] == 'ws':
            srd(a, 20, 6, LAY[R1[1]], SZ)
        else:
            srd(a, 20, 28, 0, SZ)
    if R2:
        srd(a, 24, 6, LAY[R2[1]], SZ)
    a("s_lshr_b32 s36, s35, 1")
    a("s_and_b32 s37, s35, 1")
    a("v_lshrrev_b32 v1, 3, v2")
    a("v_and_b32 v3, 7, v2")
    a(f"s_mul_i32 s38, s35, {BM//4}")
    a("s_add_u32 s38, s38, s33")
    a("v_add_u32 v4, s38, v1")
    a(f"s_mov_b32 s38, {lda2}")
    a("v_mul_lo_u32 v4, v4, s38")
    a("v_lshrrev_b32 v5, 1, v1")
    a("v_xor_b32 v6, v3, v5")
    a(f"v_lshl_add_u32 v{vGA}, v6, 4, v4")
    a("v_xor_b32 v6, 4, v6")
    a(f"v_lshl_add_u32 v{vGA+1}, v6, 4, v4")
    if shift:
        a(f"v_xor_b32 v{vKC}, v3, v5")
        a(f"v_lshlrev_b32 v{vKC}, 3, v{vKC}")
        a(f"v_xor_b32 v{vKC+1}, 32, v{vKC}")
    if BN == 64:
        a("v_lshrrev_b32 v1, 3, v2")
        a("v_and_b32 v3, 7, v2")
        a("v_bfe_u32 v5, v1, 1, 1")
        a("v_lshlrev_b32 v5, 2, v5")
    else:
        a("v_lshrrev_b32 v1, 4, v2")
        a("v_and_b32 v3, 15, v2")
        a("v_lshlrev_b32 v5, 2, v1")
    a("v_xor_b32 v3, v3, v5")
    a("s_lshl_b32 s38, s35, 4")
    a("v_add_u32 v1, s38, v1")
    a(f"s_mov_b32 s38, {ldb2}")
    a(f"v_mul_lo_u32 v{vGB}, v1, s38")
    a(f"v_lshl_add_u32 v{vGB}, v3, 4, v{vGB}")
    a("s_lshl_b32 s38, s34, 1")
    a(f"v_add_u32 v{vGB}, s38, v{vGB}")
    a("v_and_b32 v1, 31, v2")
    a("v_bfe_u32 v3, v2, 1, 3")
    a("v_lshrrev_b32 v4, 5, v2")
    a("v_xor_b32 v3, v3, v4")
    a(f"s_mul_i32 s38, s36, {TM}")
    a("v_add_u32 v1, s38, v1")
    a("v_lshlrev_b32 v1, 7, v1")
    for kk in range(4):
        a(f"v_xor_b32 v5, {2*kk}, v3")
        a(f"v_lshl_add_u32 v{vRA0+kk}, v5, 4, v1")
    a("v_lshrrev_b32 v1, 5, v2")
    a("v_bfe_u32 v3, v2, 2, 2")
    a("v_lshl_add_u32 v1, v1, 3, v3")
    a(f"v_lshlrev_b32 v1, {7 if BN==64 else 8}, v1")
    a("v_bfe_u32 v4, v2, 4, 1")
    a("v_and_b32 v5, 3, v2")
    a("v_lshl_add_u32 v4, v4, 2, v5")
    a("v_lshl_add_u32 v1, v4, 3, v1")
    a(f"v_add_u32 v1, {ABYTES}, v1")
    for j in range(TJ):
        if BN == 64:
            a("v_lshrrev_b32 v4, 1, v3")
            a("v_xor_b32 v4, s37, v4")
        else:
            a("s_lshl_b32 s38, s37, 1")
            a(f"s_add_u32 s38, s38, {j}")
            a("v_xor_b32 v4, s38, v3")
        a(f"v_lshl_add_u32 v{vRB0+j}, v4, 6, v1")
    sA0, sB0 = 40, 44
    for i in range(AI):
        a(f"s_mov_b32 s{sA0+i}, {i*8*lda2}")
    for i in range(BI):
        a(f"s_mov_b32 s{sB0+i}, {i*(8 if BN==64 else 4)*ldb2}")
    for i in range(TI * TJ * 16):
        a(f"v_mov_b32 v{vAcc+i}, 0")
    a(f"s_mul_i32 s48, s35, {(BM//4)*128}")
    a(f"s_mul_i32 s49, s35, {16*BN*2}")
    a(f"s_add_u32 s49, s49, {ABYTES}")

    def shift_offsets(ks):
        for par in range(2):
            a(f"v_add_u32 v1, s{ks}, v{vKC+par}")
            a(f"v_mov_b32 v3, {-1*lda2}")
            a("v_cmp_le_u32 vcc, 144, v1")
            a(f"v_mov_b32 v{vE}, {1*lda2}")
            a("s_nop 0")
            a(f"v_cndmask_b32 v3, v3, v{vE}, vcc")
            a("v_cmp_le_u32 vcc, 288, v1")
            a(f"v_mov_b32 v{vE}, {-2*lda2}")
            a("s_nop 0")
            a(f"v_cndmask_b32 v3, v3, v{vE}, vcc")
            a("v_cmp_le_u32 vcc, 432, v1")
            a(f"v_mov_b32 v{vE}, {2*lda2}")
            a("s_nop 0")
            a(f"v_cndmask_b32 v3, v3, v{vE}, vcc")
            a(f"v_add_u32 v3, v3, v{vGA+par}")
            a(f"v_lshl_add_u32 v3, s{ks}, 1, v3")
            for i in range(par, AI, 2):
                a(f"v_add_u32 v{vGAs+i}, {i*8*lda2}, v3")
    def issue(sslot):
        if shift:
            shift_offsets(39)
        for i in range(AI):
            a(f"s_add_u32 s55, s{sslot}, s48")
            a(f"s_add_u32 m0, s55, {i*8*128}")
            a("s_nop 0")
            if shift:
                a(f"buffer_load_dwordx4 v{vGAs+i}, s[8:11], 0 offen lds")
            else:
                a(f"buffer_load_dwordx4 v{vGA+(i&1)}, s[8:11], s{sA0+i} offen lds")
        for i in range(BI):
            a(f"s_add_u32 s55, s{sslot}, s49")
            a(f"s_add_u32 m0, s55, {i*1024}")
            a("s_nop 0")
            a(f"buffer_load_dwordx4 v{vGB}, s[12:15], s{sB0+i} offen lds")
        for i in range(AI):
            a(f"s_add_u32 s{sA0+i}, s{sA0+i}, 128")
        for i in range(BI):
            a(f"s_add_u32 s{sB0+i}, s{sB0+i}, {64*ldb2}")
        a("s_add_u32 s39, s39, 64")
        a(f"s_add_u32 s{sslot}, s{sslot}, {STG}")
        a(f"s_cmp_ge_u32 s{sslot}, {LDS}")
        a(f"s_cselect_b32 s{sslot}, 0, s{sslot}")
    def read_frags(kk, st):
        for i in range(TI):
            r = vAf + (st * TI + i) * 4
            a(f"ds_read_b128 v[{r}:{r+3}], v{vRA+kk} offset:{i*32*128}")
        for j in range(TJ):
            r = vBf + (st * TJ + j) * 4
            a(f"ds_read_b64_tr_b16 v[{r}:{r+1}], v{vRB+j} offset:{(kk*16)*BN*2}")
            a(f"ds_read_b64_tr_b16 v[{r+2}:{r+3}], v{vRB+j} offset:{(kk*16+4)*BN*2}")
    nreads = TI + 2 * TJ
    a("s_mov_b32 s39, 0")
    a("s_mov_b32 s56, 0")
    a("s_mov_b32 s57, 0")
    for t in range(NS - 1):
        issue(56)
    a("s_mov_b32 s58, 0")
    LOOP = a.newlabel("GLOOP")
    a.label(LOOP)
    a(f"s_waitcnt vmcnt({(NS-2)*NL})")
    a("s_barrier")
    issue(56)
    for kk in range(4):
        a(f"v_add_u32 v{vRA+kk}, s57, v{vRA0+kk}")
    for j in range(TJ):
        a(f"v_add_u32 v{vRB+j}, s57, v{vRB0+j}")
    read_frags(0, 0)
    for kk in range(4):
        st = kk & 1
        if kk < 3:
            read_frags(kk + 1, st ^ 1)
            a(f"s_waitcnt lgkmcnt({nreads})")
        else:
            a("s_waitcnt lgkmcnt(0)")
        for i in range(TI):
            for j in range(TJ):
                ra = vAf + (st * TI + i) * 4
                rb = vBf + (st * TJ + j) * 4
                c = vAcc + (i * TJ + j) * 16
                if swapped:
                    a(f"v_mfma_f32_32x32x16_bf16 v[{c}:{c+15}], v[{rb}:{rb+3}], v[{ra}:{ra+3}], v[{c}:{c+15}]")
                else:
                    a(f"v_mfma_f32_32x32x16_bf16 v[{c}:{c+15}], v[{ra}:{ra+3}], v[{rb}:{rb+3}], v[{c}:{c+15}]")
    a(f"s_add_u32 s57, s57, {STG}")
    a(f"s_cmp_ge_u32 s57, {LDS}")
    a("s_cselect_b32 s57, 0, s57")
    a("s_add_u32 s58, s58, 1")
    a(f"s_cmp_lt_u32 s58, {nk}")
    a(f"s_cbranch_scc1 {LOOP}")
    a("s_waitcnt vmcnt(0)")
    a("s_nop 15")
    a("s_nop 15")
    gemm_epilogue(a, epi, N, TM, TN, TI, TJ, vAcc, vE, vGA, R1, R2)
    a.label(LEND)
    a("s_endpgm")
    a.end(name, (ntiles, 1, 1), (256, 1, 1), LDS, nvg)

def f32bits(x):
    import struct
    return struct.unpack("<I", struct.pack("<f", x))[0]

def attn_kernel(a, name):
    KSTR, VSTR = 576, 528
    KREG = 32 * KSTR
    STG = 28672
    T = 8.0
    a.begin(name)
    a("s_cmp_ge_u32 s2, 256")
    LEND = a.newlabel("AEND")
    a(f"s_cbranch_scc1 {LEND}")
    a(f"s_load_dwordx2 s[6:7], s[0:1], {KA['ws']}")
    a("s_lshr_b32 s30, s2, 3")
    a("s_and_b32 s31, s2, 7")
    a("v_lshrrev_b32 v1, 6, v0")
    a("s_nop 0")
    a("v_readfirstlane_b32 s32, v1")
    a("v_and_b32 v2, 63, v0")
    a("s_waitcnt lgkmcnt(0)")
    srd(a, 8, 6, LAY['QKVT'], 1728 * 4096)
    srd(a, 12, 6, LAY['O'], SZ)
    vS = [10, 26]
    vO = 42
    vP = 58
    vKf = 66
    vVf = 74
    vQf = 82
    vSt = 90
    vG = 102
    vL = 105
    vK, vV = 108, 109
    vM, vTh = 110, 111
    vK0, vV0 = 120, 121
    vt = 112
    vKf2, vVf2 = 122, 130
    nvg = 140
    a("v_mov_b32 v4, 0"); a("v_mov_b32 v5, 0"); a("v_mov_b32 v6, 0"); a("v_mov_b32 v7, 0")
    a("v_lshlrev_b32 v3, 4, v0")
    a(f"v_add_u32 v3, {18*KSTR}, v3")
    a("v_cmp_gt_u32 vcc, 504, v0")
    a("s_and_saveexec_b64 s[34:35], vcc")
    a("ds_write_b128 v3, v[4:7]")
    a(f"ds_write_b128 v3, v[4:7] offset:{STG}")
    a("s_mov_b64 exec, s[34:35]")
    a("v_mov_b32 v4, 0x3f803f80"); a("v_mov_b32 v5, 0x3f803f80"); a("v_mov_b32 v6, 0x3f803f80"); a("v_mov_b32 v7, 0x3f803f80")
    a("v_lshlrev_b32 v3, 4, v0")
    a(f"v_add_u32 v3, {KREG + 18*VSTR}, v3")
    a("v_cmp_gt_u32 vcc, 32, v0")
    a("s_and_saveexec_b64 s[34:35], vcc")
    a("ds_write_b128 v3, v[4:7]")
    a(f"ds_write_b128 v3, v[4:7] offset:{STG}")
    a("s_mov_b64 exec, s[34:35]")
    a("s_mul_i32 s33, s30, 18")
    for i in range(3):
        a(f"v_add_u32 v3, {512*i}, v0")
        a("v_cmp_le_u32 vcc, 576, v3")
        a("v_subrev_u32 v4, 576, v3")
        a("s_nop 0")
        a("v_cndmask_b32 v4, v3, v4, vcc")
        a("v_cndmask_b32_e64 v5, 0, 1, vcc")
        a("v_lshrrev_b32 v6, 5, v4")
        a("v_and_b32 v7, 31, v4")
        a("v_mul_u32_u24 v8, 576, v5")
        a("v_add3_u32 v8, v8, v6, s33")
        a("v_add_u32 v8, 576, v8")
        a("v_lshlrev_b32 v8, 12, v8")
        a(f"v_lshl_add_u32 v{vG+i}, v7, 4, v8")
        a(f"v_mul_u32_u24 v8, {KSTR}, v6")
        a(f"v_mul_u32_u24 v9, {VSTR}, v6")
        a(f"v_add_u32 v9, {KREG}, v9")
        a("v_cndmask_b32 v8, v8, v9, vcc")
        a(f"v_lshl_add_u32 v{vL+i}, v7, 4, v8")
    def stage_loads():
        a(f"buffer_load_dwordx4 v[{vSt}:{vSt+3}], v{vG}, s[8:11], s40 offen")
        a(f"buffer_load_dwordx4 v[{vSt+4}:{vSt+7}], v{vG+1}, s[8:11], s40 offen")
        a(f"buffer_load_dwordx4 v[{vSt+8}:{vSt+11}], v{vG+2}, s[8:11], s40 offen")
    def stage_writes(sbase):
        a(f"v_add_u32 v3, s{sbase}, v{vL}")
        a(f"ds_write_b128 v3, v[{vSt}:{vSt+3}]")
        a(f"v_add_u32 v4, s{sbase}, v{vL+1}")
        a(f"ds_write_b128 v4, v[{vSt+4}:{vSt+7}]")
        LS = a.newlabel("AW")
        a("s_cmp_ge_u32 s32, 2")
        a(f"s_cbranch_scc1 {LS}")
        a(f"v_add_u32 v5, s{sbase}, v{vL+2}")
        a(f"ds_write_b128 v5, v[{vSt+8}:{vSt+11}]")
        a.label(LS)
    a("s_cmp_ge_u32 s32, 2")
    a("s_cselect_b64 vcc, -1, 0")
    a(f"v_mov_b32 v3, {BIG}")
    a("s_nop 0")
    a(f"v_cndmask_b32 v{vG+2}, v{vG+2}, v3, vcc")
    a("v_and_b32 v3, 31, v2")
    a("s_lshl_b32 s36, s31, 8")
    a("s_lshl_b32 s37, s32, 5")
    a("s_add_u32 s36, s36, s37")
    a("v_add_u32 v3, s36, v3")
    a("v_lshrrev_b32 v4, 5, v2")
    a("v_lshl_add_u32 v5, v4, 3, s33")
    a("v_lshlrev_b32 v5, 12, v5")
    a("v_lshl_add_u32 v5, v3, 1, v5")
    for j in range(8):
        a(f"buffer_load_ushort v{vt+j}, v5, s[8:11], 0 offen")
        a("v_add_u32 v5, 0x1000, v5")
    a("v_add_u32 v5, 16, s33")
    a("v_lshlrev_b32 v5, 12, v5")
    a("v_lshl_add_u32 v5, v3, 1, v5")
    a("v_cmp_eq_u32 vcc, 1, v4")
    a(f"v_mov_b32 v6, {BIG}")
    a("s_nop 0")
    a("v_cndmask_b32 v5, v5, v6, vcc")
    a("buffer_load_ushort v6, v5, s[8:11], 0 offen")
    a("buffer_load_ushort v7, v5, s[8:11], 0 offen offset:4095")
    a("s_waitcnt vmcnt(0)")
    a.lines.pop(); a.lines.pop()
    a("v_add_u32 v5, 0x1000, v5")
    a("buffer_load_ushort v7, v5, s[8:11], 0 offen")
    a("s_waitcnt vmcnt(0)")
    for j in range(4):
        a(f"v_lshl_or_b32 v{vQf+j}, v{vt+2*j+1}, 16, v{vt+2*j}")
    a(f"v_lshl_or_b32 v{vQf+4}, v7, 16, v6")
    for j in range(5, 8):
        a(f"v_mov_b32 v{vQf+j}, 0")
    a("v_lshrrev_b32 v3, 5, v2")
    a("v_bfe_u32 v4, v2, 2, 2")
    a("v_lshl_add_u32 v3, v3, 3, v4")
    a(f"v_mul_u32_u24 v{vK}, {KSTR}, v3")
    a("v_bfe_u32 v3, v2, 4, 1")
    a("v_and_b32 v4, 3, v2")
    a("v_lshl_add_u32 v3, v3, 2, v4")
    a(f"v_lshl_add_u32 v{vK}, v3, 3, v{vK}")
    a("v_and_b32 v3, 31, v2")
    a("v_min_u32 v3, 18, v3")
    a(f"v_mul_u32_u24 v{vV}, {VSTR}, v3")
    a("v_lshrrev_b32 v3, 5, v2")
    a(f"v_lshl_add_u32 v{vV}, v3, 4, v{vV}")
    a(f"v_add_u32 v{vV}, {KREG}, v{vV}")
    a(f"v_mov_b32 v{vK0}, v{vK}")
    a(f"v_mov_b32 v{vV0}, v{vV}")
    a(f"v_mov_b32 v{vM}, 0xf149f2ca")
    a(f"v_mov_b32 v{vTh}, 0xf149f2ca")
    for i in range(16):
        a(f"v_mov_b32 v{vO+i}, 0")
    a(f"v_mov_b32 v{vKf+6}, 0"); a(f"v_mov_b32 v{vKf+7}, 0")
    a(f"v_mov_b32 v{vKf2+6}, 0"); a(f"v_mov_b32 v{vKf2+7}, 0")
    a("s_mov_b32 s40, 0")
    stage_loads()
    a("s_waitcnt vmcnt(0)")
    a("s_mov_b32 s41, 0")
    stage_writes(41)
    a("s_waitcnt lgkmcnt(0)")
    a("s_barrier")
    a("s_mov_b32 s42, 0")
    LOOP = a.newlabel("ALOOP")
    a.label(LOOP)
    LNP = a.newlabel("ANP")
    a("s_cmp_ge_u32 s42, 7")
    a(f"s_cbranch_scc1 {LNP}")
    a("s_add_u32 s40, s40, 512")
    stage_loads()
    a.label(LNP)
    KF = [vKf, vKf2]; VF = [vVf, vVf2]
    def kread(kb):
        k = KF[kb & 1]
        a(f"ds_read_b64_tr_b16 v[{k}:{k+1}], v{vK} offset:{64*kb}")
        a(f"ds_read_b64_tr_b16 v[{k+2}:{k+3}], v{vK} offset:{64*kb + 4*KSTR}")
        a(f"ds_read_b64_tr_b16 v[{k+4}:{k+5}], v{vK} offset:{64*kb + 16*KSTR}")
    def vread(kb):
        v = VF[kb & 1]
        a(f"ds_read_b128 v[{v}:{v+3}], v{vV} offset:{64*kb}")
        a(f"ds_read_b128 v[{v+4}:{v+7}], v{vV} offset:{64*kb+32}")
    def smfma(kb):
        s = vS[kb & 1]; k = KF[kb & 1]
        a(f"v_mfma_f32_32x32x16_bf16 v[{s}:{s+15}], v[{k}:{k+3}], v[{vQf}:{vQf+3}], 0")
        a(f"v_mfma_f32_32x32x16_bf16 v[{s}:{s+15}], v[{k+4}:{k+7}], v[{vQf+4}:{vQf+7}], v[{s}:{s+15}]")
    kread(0); vread(0); kread(1)
    a("s_waitcnt lgkmcnt(5)")
    smfma(0)
    for kb in range(8):
        sb = kb & 1
        s = vS[sb]
        vVf = VF[sb]
        if kb < 7:
            a("s_waitcnt lgkmcnt(0)")
            smfma(kb + 1)
            vread(kb + 1)
            if kb < 6:
                kread(kb + 2)
        else:
            a("s_waitcnt lgkmcnt(0)")
        a(f"v_max3_f32 v{vt}, v{s}, v{s+1}, v{s+2}")
        for i in range(3, 15, 2):
            a(f"v_max3_f32 v{vt}, v{vt}, v{s+i}, v{s+i+1}")
        a(f"v_max_f32 v{vt}, v{vt}, v{s+15}")
        a(f"v_cmp_gt_f32 vcc, v{vt}, v{vTh}")
        LR, LC = a.newlabel("ARARE"), a.newlabel("ACOM")
        a("s_nop 1")
        a(f"s_cbranch_vccz {LC}")
        a("s_nop 15"); a("s_nop 15")
        a(f"v_mov_b32 v{vt+1}, v{vt}")
        a(f"v_mov_b32 v{vt+2}, v{vt}")
        a("s_nop 1")
        a(f"v_permlane32_swap_b32 v{vt+1}, v{vt+2}")
        a("s_nop 1")
        a(f"v_max3_f32 v{vt+1}, v{vt+1}, v{vt+2}, v{vM}")
        a(f"v_sub_f32 v{vt+2}, v{vM}, v{vt+1}")
        a(f"v_exp_f32 v{vt+2}, v{vt+2}")
        a(f"v_mov_b32 v{vM}, v{vt+1}")
        a(f"v_add_f32 v{vTh}, {T}, v{vt+1}")
        for i in range(16):
            a(f"v_mul_f32 v{vO+i}, v{vO+i}, v{vt+2}")
        a("s_nop 1")
        a.label(LC)
        for i in range(16):
            a(f"v_sub_f32 v{s+i}, v{s+i}, v{vM}")
        for i in range(16):
            a(f"v_exp_f32 v{s+i}, v{s+i}")
        a("s_nop 0")
        for i in range(8):
            a(f"v_cvt_pk_bf16_f32 v{vP+i}, v{s+2*i}, v{s+2*i+1}")
        a("s_nop 1")
        a(f"v_mfma_f32_32x32x16_bf16 v[{vO}:{vO+15}], v[{vVf}:{vVf+3}], v[{vP}:{vP+3}], v[{vO}:{vO+15}]")
        a(f"v_mfma_f32_32x32x16_bf16 v[{vO}:{vO+15}], v[{vVf+4}:{vVf+7}], v[{vP+4}:{vP+7}], v[{vO}:{vO+15}]")
    LFIN = a.newlabel("AFIN")
    a("s_cmp_ge_u32 s42, 7")
    a(f"s_cbranch_scc1 {LFIN}")
    a("s_waitcnt vmcnt(0)")
    a("s_xor_b32 s41, s41, " + str(STG))
    stage_writes(41)
    a(f"v_add_u32 v{vK}, s41, v{vK0}")
    a(f"v_add_u32 v{vV}, s41, v{vV0}")
    a("s_waitcnt lgkmcnt(0)")
    a("s_barrier")
    a("s_add_u32 s42, s42, 1")
    a(f"s_branch {LOOP}")
    a.label(LFIN)
    a("s_nop 15"); a("s_nop 15")
    a(f"v_mov_b32 v{vt}, v{vO+10}")
    a(f"v_mov_b32 v{vt+1}, v{vO+10}")
    a("s_nop 1")
    a(f"v_permlane32_swap_b32 v{vt}, v{vt+1}")
    a("s_nop 1")
    a(f"v_rcp_f32 v{vt}, v{vt}")
    a("s_nop 0")
    for i in range(10):
        a(f"v_mul_f32 v{vO+i}, v{vO+i}, v{vt}")
    for i in range(5):
        a(f"v_cvt_pk_bf16_f32 v{vP+i}, v{vO+2*i}, v{vO+2*i+1}")
    a("v_and_b32 v3, 31, v2")
    a("v_add_u32 v3, s36, v3")
    a("s_movk_i32 s38, 1152")
    a("v_mul_lo_u32 v3, v3, s38")
    a("s_mul_i32 s38, s30, 36")
    a("v_add_u32 v3, s38, v3")
    a("v_lshrrev_b32 v4, 5, v2")
    a("v_lshl_add_u32 v3, v4, 3, v3")
    a(f"buffer_store_dwordx2 v[{vP}:{vP+1}], v3, s[12:15], 0 offen")
    a(f"buffer_store_dwordx2 v[{vP+2}:{vP+3}], v3, s[12:15], 0 offen offset:16")
    a("v_cmp_eq_u32 vcc, 1, v4")
    a(f"v_mov_b32 v5, {BIG}")
    a("s_nop 0")
    a("v_cndmask_b32 v3, v3, v5, vcc")
    a(f"buffer_store_dword v{vP+4}, v3, s[12:15], 0 offen offset:32")
    a.label(LEND)
    a("s_endpgm")
    a.end(name, (256, 1, 1), (512, 1, 1), 2 * STG, nvg)

def build():
    a = Asm()
    ln_kernel(a, "ln1_kernel", ('arg', 'x'), 'XN')
    gemm2_kernel(a, "qkv_kernel", 1728, 576, ('ws', 'XN'), 'wqkv', 'qkvt', NS=3, C=('ws', 'QKVT'))
    attn_kernel(a, "attn_kernel")
    gemm2_kernel(a, "wo_kernel", 576, 576, ('ws', 'O'), 'wo', 'res1', C=('ws', 'H'), R1=('arg', 'x'))
    ln_kernel(a, "ln2_kernel", ('ws', 'H'), 'XP', 'XPP')
    gemm2_kernel(a, "w1_kernel", 576, 576, ('ws', 'XPP'), 'w1', 'gelu', C=('ws', 'HH'))
    gemm2_kernel(a, "w2_kernel", 576, 576, ('ws', 'HH'), 'w2', 'res1', C=('ws', 'X1'), R1=('ws', 'XP'), shift=True)
    ln_kernel(a, "ln3_kernel", ('ws', 'X1'), 'X1N')
    gemm2_kernel(a, "w3_kernel", 4608, 576, ('ws', 'X1N'), 'w3', 'gelu', BN=128, NS=4, C=('ws', 'G'))
    gemm2_kernel(a, "w4_kernel", 576, 4608, ('ws', 'G'), 'w4', 'res2', NS=6, C=('arg', 'out'), R1=('ws', 'X1'), R2=('ws', 'H'))
    hdr = ["; generated by dev/gen.py"]
    for (name, g, b, lds, vg, sg) in a.kernels:
        hdr.append(f"; @launch kernel={name} grid=({g[0]},{g[1]},{g[2]}) block=({b[0]},{b[1]},{b[2]}) lds={lds}")
    out = hdr + ['.amdgcn_target "amdgcn-amd-amdhsa--gfx950"', ".text"] + a.lines
    out.append('.section .rodata,"a"')
    for (name, g, b, lds, vg, sg) in a.kernels:
        vg4 = (vg + 3) // 4 * 4
        out += [".p2align 6", f".amdhsa_kernel {name}",
                f"  .amdhsa_next_free_vgpr {vg}", f"  .amdhsa_next_free_sgpr {sg}",
                f"  .amdhsa_accum_offset {vg4}", "  .amdhsa_group_segment_fixed_size 0",
                "  .amdhsa_kernarg_size 88", "  .amdhsa_user_sgpr_count 2",
                "  .amdhsa_user_sgpr_kernarg_segment_ptr 1", "  .amdhsa_system_sgpr_workgroup_id_x 1",
                ".end_amdhsa_kernel"]
    return "\n".join(out) + "\n"

if __name__ == "__main__":
    s = build()
    open("sequential_preLN__mha_block__mixer_s_mlp__prompt.s", "w").write(s)
    json.dump(LAY, open("layout.json", "w"))
    print("ok", len(s))
```
